```python
import torch

def _softmax(x, axis=-1):
    return torch.softmax(x, dim=axis)
def _gelu(x):
    return torch.nn.functional.gelu(x, approximate="tanh")
def _silu(x):
    return torch.nn.functional.silu(x)
def _sigmoid(x):
    return torch.sigmoid(x)
def _layernorm(x, axis=-1, eps=1e-5):
    m = x.mean(dim=axis, keepdim=True)
    v = x.var(dim=axis, keepdim=True, unbiased=False)
    return (x - m) / torch.sqrt(v + eps)
def _scatter_add(tgt, idx, src, axis=0):
    return tgt.clone().index_add_(axis, idx, src)
def _segment_sum(src, seg, n):
    out = torch.zeros((n,) + src.shape[1:], dtype=src.dtype)
    return out.index_add_(0, seg, src)
def _pad(x, pw):
    flat = tuple(v for pair in reversed(pw) for v in pair)
    return torch.nn.functional.pad(x, flat)

kernel_name = 'parallel_sum__mha_block__swiglu_ffn__prompt'

def setup_inputs():

    _w = (lambda a: (lambda t: t.to(torch.bfloat16) if t.is_floating_point() else t)(torch.as_tensor(a)))
    def _A_setup():
        B, S, D, H = 1, 2048, 1024, 32
        return {
            "x": _w((lambda *s: torch.randn(*s, dtype=torch.bfloat16) * 0.05)(B, S, D)),
            "wqkv": _w((lambda *s: torch.randn(*s, dtype=torch.bfloat16) * 0.05)(D, 3 * D)),
            "wo": _w((lambda *s: torch.randn(*s, dtype=torch.bfloat16) * 0.05)(D, D)),
        }
    _A_in = _A_setup()

    def _B_setup():
        B, S, D, F = 1, 2048, 1024, 3584
        return {
            "x": _w((lambda *s: torch.randn(*s, dtype=torch.bfloat16) * 0.05)(B, S, D)),
            "w_gate": _w((lambda *s: torch.randn(*s, dtype=torch.bfloat16) * 0.05)(D, F)),
            "w_up": _w((lambda *s: torch.randn(*s, dtype=torch.bfloat16) * 0.05)(D, F)),
            "w_down": _w((lambda *s: torch.randn(*s, dtype=torch.bfloat16) * 0.05)(F, D)),
        }
    _B_in = _B_setup()

    return {
        "A_x": _A_in["x"],
        "A_wqkv": _A_in["wqkv"],
        "A_wo": _A_in["wo"],
        "B_x": _B_in["x"],
        "B_w_gate": _B_in["w_gate"],
        "B_w_up": _B_in["w_up"],
        "B_w_down": _B_in["w_down"],
    }

def reference(A_x, A_wqkv, A_wo, B_x, B_w_gate, B_w_up, B_w_down):
    def _A_ref(x, wqkv, wo):
        B, S, D = x.shape
        H = 32
        Dh = D // H
        qkv = (lambda x, *d: x.permute(*d))((x @ wqkv).reshape(B, S, 3, H, Dh), 2, 0, 3, 1, 4)
        q, k, v = qkv[0], qkv[1], qkv[2]
        scores = torch.einsum("bhqd,bhkd->bhqk", q, k) * (Dh ** -0.5)
        p = _softmax(scores, axis=-1)
        o = torch.einsum("bhqk,bhkd->bhqd", p, v)
        return (lambda x, *d: x.permute(*d))(o, 0, 2, 1, 3).reshape(B, S, D) @ wo

    def _B_ref(x, w_gate, w_up, w_down):
        g = _silu(x @ w_gate)
        u = x @ w_up
        return (g * u) @ w_down

    x = A_x
    xn = _layernorm(x, axis=-1)
    return x + _A_ref(xn, A_wqkv, A_wo) + _B_ref(xn, B_w_gate, B_w_up, B_w_down)
```

```python
import struct


def f32bits(x):
    return struct.unpack("<I", struct.pack("<f", x))[0]


def v(i, n=1):
    return f"v{i}" if n == 1 else f"v[{i}:{i+n-1}]"


def a(i, n=1):
    return f"a{i}" if n == 1 else f"a[{i}:{i+n-1}]"


def s(i, n=1):
    return f"s{i}" if n == 1 else f"s[{i}:{i+n-1}]"


class Asm:
    def __init__(self, name):
        self.name = name
        self.lines = []
        self.nlabel = 0

    def e(self, txt):
        self.lines.append("    " + txt)

    def c(self, txt):
        self.lines.append("    ; " + txt)

    def label(self, l):
        self.lines.append(l + ":")

    def newlabel(self, base):
        self.nlabel += 1
        return f"L_{self.name}_{base}_{self.nlabel}"

    def text(self):
        return "\n".join(self.lines)

    def srd(self, d, base, nbytes):
        self.e(f"s_mov_b32 s{d}, s{base}")
        self.e(f"s_and_b32 s{d+1}, s{base+1}, 0xffff")
        self.e(f"s_mov_b32 s{d+2}, {nbytes}")
        self.e(f"s_mov_b32 s{d+3}, 0x00020000")

    def nop(self, n):
        while n > 0:
            k = min(n, 16)
            self.e(f"s_nop {k-1}")
            n -= k


def kernel_wrap(name, body, vgpr, sgpr, accum):
    return f""".globl {name}
.p2align 8
.type {name},@function
{name}:
{body}
"""


def kernel_desc(name, vgpr, sgpr, accum):
    return f""".p2align 6
.amdhsa_kernel {name}
  .amdhsa_next_free_vgpr {vgpr}
  .amdhsa_next_free_sgpr {sgpr}
  .amdhsa_accum_offset {accum}
  .amdhsa_group_segment_fixed_size 0
  .amdhsa_kernarg_size 80
  .amdhsa_user_sgpr_count 2
  .amdhsa_user_sgpr_kernarg_segment_ptr 1
  .amdhsa_system_sgpr_workgroup_id_x 1
.end_amdhsa_kernel
"""
```

```python
from asmlib import *
from layout import *


def wave_reduce_add(A, r, tmp, sbase):
    A.nop(2)
    A.e(f"v_add_f32 v{r}, v{r}, v{r} quad_perm:[1,0,3,2] row_mask:0xf bank_mask:0xf")
    A.nop(2)
    A.e(f"v_add_f32 v{r}, v{r}, v{r} quad_perm:[2,3,0,1] row_mask:0xf bank_mask:0xf")
    A.nop(2)
    A.e(f"v_add_f32 v{r}, v{r}, v{r} row_half_mirror row_mask:0xf bank_mask:0xf")
    A.nop(2)
    A.e(f"v_add_f32 v{r}, v{r}, v{r} row_mirror row_mask:0xf bank_mask:0xf")
    A.nop(2)
    for k in range(4):
        A.e(f"v_readlane_b32 s{sbase+k}, v{r}, {16*k}")
    A.nop(2)
    A.e(f"v_mov_b32 v{tmp}, s{sbase}")
    for k in range(1, 4):
        A.e(f"v_add_f32 v{tmp}, s{sbase+k}, v{tmp}")


def gen_k0():
    A = Asm("k0")
    done = "L_k0_done"
    A.e("s_cmp_ge_u32 s2, 512")
    A.e(f"s_cbranch_scc1 {done}")
    A.e("s_load_dwordx2 s[4:5], s[0:1], 0")
    A.e("s_load_dwordx2 s[6:7], s[0:1], 72")
    A.e("v_and_b32 v1, 63, v0")
    A.e("v_lshrrev_b32 v2, 6, v0")
    A.e("s_lshl_b32 s3, s2, 2")
    A.e("v_add_u32 v2, s3, v2")
    A.e("v_lshlrev_b32 v2, 11, v2")
    A.e("v_lshl_add_u32 v2, v1, 4, v2")
    A.e("s_waitcnt lgkmcnt(0)")
    A.srd(8, 4, 2048 * 1024 * 2)
    A.srd(12, 6, WS_BYTES)
    A.e("buffer_load_dwordx4 v[4:7], v2, s[8:11], 0 offen")
    A.e("buffer_load_dwordx4 v[8:11], v2, s[8:11], 0 offen offset:1024")
    A.e("s_mov_b32 s24, 0xffff0000")
    A.e("s_waitcnt vmcnt(0)")
    for i in range(8):
        A.e(f"v_lshlrev_b32 v{16+2*i}, 16, v{4+i}")
        A.e(f"v_and_b32 v{17+2*i}, s24, v{4+i}")
    for i in range(8):
        A.e(f"v_add_f32 v{32+i}, v{16+2*i}, v{17+2*i}")
    for i in range(4):
        A.e(f"v_add_f32 v{32+i}, v{32+i}, v{36+i}")
    A.e("v_add_f32 v32, v32, v34")
    A.e("v_add_f32 v33, v33, v35")
    A.e("v_add_f32 v40, v32, v33")
    wave_reduce_add(A, 40, 41, 16)
    A.e(f"v_mul_f32 v41, {hex(f32bits(1.0/1024))}, v41")
    for i in range(16):
        A.e(f"v_sub_f32 v{48+i}, v{16+i}, v41")
    for i in range(4):
        A.e(f"v_mul_f32 v{32+i}, v{48+i}, v{48+i}")
    for i in range(4, 16):
        A.e(f"v_fmac_f32 v{32+(i%4)}, v{48+i}, v{48+i}")
    A.e("v_add_f32 v32, v32, v33")
    A.e("v_add_f32 v34, v34, v35")
    A.e("v_add_f32 v40, v32, v34")
    wave_reduce_add(A, 40, 42, 16)
    A.e(f"v_mul_f32 v42, {hex(f32bits(1.0/1024))}, v42")
    A.e("v_cvt_pk_bf16_f32 v43, v41, v42")
    A.e("v_lshlrev_b32 v44, 16, v43")
    A.e("v_and_b32 v45, s24, v43")
    A.e(f"v_add_f32 v45, {hex(f32bits(1e-5))}, v45")
    A.e("v_cvt_pk_bf16_f32 v45, v45, v45")
    A.e("v_and_b32 v45, s24, v45")
    A.e("v_sqrt_f32 v45, v45")
    A.nop(1)
    A.e("v_cvt_pk_bf16_f32 v45, v45, v45")
    A.e("v_and_b32 v45, s24, v45")
    A.e("v_rcp_f32 v45, v45")
    for i in range(16):
        A.e(f"v_sub_f32 v{48+i}, v{16+i}, v44")
    for i in range(8):
        A.e(f"v_cvt_pk_bf16_f32 v{32+i}, v{48+2*i}, v{49+2*i}")
    for i in range(8):
        A.e(f"v_lshlrev_b32 v{48+2*i}, 16, v{32+i}")
        A.e(f"v_and_b32 v{49+2*i}, s24, v{32+i}")
    for i in range(16):
        A.e(f"v_mul_f32 v{48+i}, v{48+i}, v45")
    for i in range(8):
        A.e(f"v_cvt_pk_bf16_f32 v{4+i}, v{48+2*i}, v{49+2*i}")
    assert WS_XN == 0
    A.e("buffer_store_dwordx4 v[4:7], v2, s[12:15], 0 offen")
    A.e("buffer_store_dwordx4 v[8:11], v2, s[12:15], 0 offen offset:1024")
    A.label(done)
    A.e("s_endpgm")
    return A.text(), dict(vgpr=64, sgpr=32, accum=64)
```

```python
from asmlib import *
from layout import *

XA = 0
XA_SLOT = 16384
QKVA = 65536
QKV_SLOT = 6144
GUA = QKVA + 4 * QKV_SLOT
GU_U = 7296
GU_SLOT = 14592
LDS_BYTES = GUA + 4 * GU_SLOT

NST = 32

S_WQKV, S_WG, S_WU, S_WS = 4, 6, 8, 10
SRD_WS = 12
SRD_B = [16, 20, 24]
S_J, S_I, S_W, S_WM = 28, 29, 30, 31
S_SOFFA = 32
S_SOFFB = [33, 34, 35]
S_STRB = [36, 37, 38]
S_M0A = [40, 44]
S_M0B = [48, 52, 56]
S_CNT = 60
S_T = 62
S_C0 = 72

V_LANE = 1
V_X = [2, 3]
V_WQ, V_WG = 4, 5
V_OFFA = [6, 7]
V_OFFB = [8, 9, 10]
V_T = 11
V_XF = 16
V_WF = 32
V_E = 52


def xf(buf, mb):
    return V_XF + (buf * 2 + mb) * 4


def wf(b):
    return V_WF + b * 4


def acc(b, mb):
    return (b * 2 + mb) * 16


def setup_bslot(A, slot, tbase):
    t, tl, tmp = S_T, S_T + 1, S_T + 2
    d = SRD_B[slot]
    A.c(f"B slot {slot} setup, t = {tbase} + wm")
    A.e(f"s_add_u32 s{t}, s{S_WM}, {tbase}")
    A.e(f"s_sub_u32 s{tl}, s{t}, 6")
    A.e(f"s_mov_b32 s{d}, s{S_WG}")
    A.e(f"s_and_b32 s{d+1}, s{S_WG+1}, 0xffff")
    A.e(f"s_mov_b32 s{d+2}, {1024*3584*2}")
    A.e(f"s_mov_b32 s{d+3}, 0x00020000")
    A.e(f"s_mov_b32 s{S_STRB[slot]}, {32*7168}")
    A.e(f"s_mov_b32 s{tmp}, {GUA}")
    A.e(f"s_mov_b32 s{tmp+1}, {GU_SLOT}")
    A.e(f"s_and_b32 s{tmp+2}, s{S_WU+1}, 0xffff")
    A.e(f"s_sub_u32 s{tmp+3}, s{t}, 13")
    A.e(f"s_cmp_ge_u32 s{t}, 13")
    A.e(f"s_cselect_b32 s{tl}, s{tmp+3}, s{tl}")
    A.e(f"s_cselect_b32 s{d}, s{S_WU}, s{d}")
    A.e(f"s_cselect_b32 s{d+1}, s{tmp+2}, s{d+1}")
    A.e(f"s_cselect_b32 s{tmp}, {GUA+GU_U}, s{tmp}")
    A.e(f"s_and_b32 s{tmp+2}, s{S_WQKV+1}, 0xffff")
    A.e(f"s_cmp_lt_u32 s{t}, 6")
    A.e(f"s_cselect_b32 s{tl}, s{t}, s{tl}")
    A.e(f"s_cselect_b32 s{d}, s{S_WQKV}, s{d}")
    A.e(f"s_cselect_b32 s{d+1}, s{tmp+2}, s{d+1}")
    A.e(f"s_cselect_b32 s{d+2}, {1024*3072*2}, s{d+2}")
    A.e(f"s_cselect_b32 s{S_STRB[slot]}, {32*6144}, s{S_STRB[slot]}")
    A.e(f"s_cselect_b32 s{tmp}, {QKVA}, s{tmp}")
    A.e(f"s_cselect_b32 s{tmp+1}, {QKV_SLOT}, s{tmp+1}")
    A.e(f"s_cselect_b64 s[{tmp+4}:{tmp+5}], -1, 0")
    A.e(f"s_lshl_b32 s{tmp+2}, s{tl}, 10")
    A.e(f"s_add_u32 s{S_M0B[slot]}, s{tmp}, s{tmp+2}")
    for r in range(1, 4):
        A.e(f"s_add_u32 s{S_M0B[slot]+r}, s{S_M0B[slot]+r-1}, s{tmp+1}")
    A.e(f"s_mov_b32 s{S_SOFFB[slot]}, 0")
    idx, k, c, o1, o2 = V_T, V_T + 1, V_T + 2, V_T + 3, V_T + 4
    A.e(f"s_lshl_b32 s{tmp+2}, s{tl}, 6")
    A.e(f"v_add_u32 v{idx}, s{tmp+2}, v{V_LANE}")
    A.e(f"v_mul_u32_u24 v{k}, 5462, v{idx}")
    A.e(f"v_lshrrev_b32 v{k}, 16, v{k}")
    A.e(f"v_mul_u32_u24 v{c}, 12, v{k}")
    A.e(f"v_sub_u32 v{c}, v{idx}, v{c}")
    A.e(f"v_mul_u32_u24 v{o1}, 6144, v{k}")
    A.e(f"v_lshrrev_b32 v{k}, 2, v{c}")
    A.e(f"v_lshl_add_u32 v{o1}, v{k}, 11, v{o1}")
    A.e(f"v_and_b32 v{k}, 3, v{c}")
    A.e(f"v_lshl_add_u32 v{o1}, v{k}, 4, v{o1}")
    A.e(f"s_lshl_b32 s{tmp+2}, s{S_J}, 6")
    A.e(f"v_add_u32 v{o1}, s{tmp+2}, v{o1}")
    A.e(f"v_mul_u32_u24 v{k}, 4682, v{idx}")
    A.e(f"v_lshrrev_b32 v{k}, 16, v{k}")
    A.e(f"v_mul_u32_u24 v{c}, 14, v{k}")
    A.e(f"v_sub_u32 v{c}, v{idx}, v{c}")
    A.e(f"v_mul_u32_u24 v{o2}, 7168, v{k}")
    A.e(f"v_lshl_add_u32 v{o2}, v{c}, 4, v{o2}")
    A.e(f"s_mul_i32 s{tmp+2}, s{S_J}, 224")
    A.e(f"v_add_u32 v{o2}, s{tmp+2}, v{o2}")
    A.e(f"v_cndmask_b32 v{V_OFFB[slot]}, v{o2}, v{o1}, s[{tmp+4}:{tmp+5}]")


def dma_list(path):
    l = [("A", 0), ("A", 1), ("B", 0), ("B", 1)]
    if path == 0:
        l.append(("B", 2))
    return l


def emit_dma_m0(A, op, ring):
    kind, i = op
    sreg = (S_M0A[i] if kind == "A" else S_M0B[i]) + ring
    A.e(f"s_mov_b32 m0, s{sreg}")


def emit_dma(A, op):
    kind, i = op
    if kind == "A":
        A.e(f"buffer_load_dwordx4 v{V_OFFA[i]}, s[{SRD_WS}:{SRD_WS+3}], s{S_SOFFA} offen lds")
    else:
        d = SRD_B[i]
        A.e(f"buffer_load_dwordx4 v{V_OFFB[i]}, s[{d}:{d+3}], s{S_SOFFB[i]} offen lds")


def emit_dma_advance(A, path):
    A.e(f"s_add_u32 s{S_SOFFA}, s{S_SOFFA}, 64")
    for (kind, i) in dma_list(path):
        if kind == "B":
            A.e(f"s_add_u32 s{S_SOFFB[i]}, s{S_SOFFB[i]}, s{S_STRB[i]}")


def blocks_of(path):
    if path == 0:
        return [("Q", 0), ("K", 1), ("V", 2), ("G", 0), ("G", 1)]
    return [("G", 2), ("G", 3), ("G", 4), ("G", 5), ("G", 6)]


def emit_xreads(A, buf, ring, s_):
    for mb in range(2):
        A.e(f"ds_read_b128 {v(xf(buf, mb), 4)}, v{V_X[s_]} offset:{XA + ring*XA_SLOT + mb*2048}")


def emit_wreads(A, bi, blk, ring, s_):
    kind, idx = blk
    for rd in range(2):
        if kind == "G":
            off = ring * GU_SLOT + (16 * s_ + 4 * rd) * 224 + idx * 32
            A.e(f"ds_read_b64_tr_b16 {v(wf(bi)+2*rd, 2)}, v{V_WG} offset:{off}")
        else:
            off = ring * QKV_SLOT + (16 * s_ + 4 * rd) * 192 + idx * 64
            A.e(f"ds_read_b64_tr_b16 {v(wf(bi)+2*rd, 2)}, v{V_WQ} offset:{off}")


def emit_mfma(A, bi, blk, mb, buf):
    kind, _ = blk
    D = a(acc(bi, mb), 16)
    W = v(wf(bi), 4)
    X = v(xf(buf, mb), 4)
    if kind == "V":
        A.e(f"v_mfma_f32_32x32x16_bf16 {D}, {X}, {W}, {D}")
    else:
        A.e(f"v_mfma_f32_32x32x16_bf16 {D}, {W}, {X}, {D}")


def emit_stage(A, path, ring, issue_dma, vm_wait, last):
    blks = blocks_of(path)
    dl = dma_list(path)
    nb = len(blks)
    for s_ in range(2):
        has_next = not (last and s_ == 1)
        nring = ring if s_ == 0 else (ring + 1) % 4
        ns = s_ ^ 1
        if s_ == 1 and has_next:
            A.e(f"s_waitcnt vmcnt({vm_wait})")
            A.e("s_barrier")
        if has_next:
            emit_xreads(A, ns, nring, ns)
        for bi, blk in enumerate(blks):
            cnt = 10 if has_next else 2 * (nb - 1 - bi)
            A.e(f"s_waitcnt lgkmcnt({cnt})")
            do_dma = s_ == 1 and issue_dma and bi < len(dl)
            if do_dma:
                emit_dma_m0(A, dl[bi], (ring + 3) % 4)
            emit_mfma(A, bi, blk, 0, s_)
            if do_dma:
                emit_dma(A, dl[bi])
            emit_mfma(A, bi, blk, 1, s_)
            if has_next:
                emit_wreads(A, bi, blk, nring, ns)
        if s_ == 1 and issue_dma:
            emit_dma_advance(A, path)


def emit_epilogue(A, path):
    blks = blocks_of(path)
    T = V_E
    U = V_E + 16
    VA = V_E + 32
    A.c("epilogue")
    A.nop(16)
    st = S_T
    A.e(f"s_lshl_b32 s{st}, s{S_I}, 3")
    A.e(f"s_lshl_b32 s{st+1}, s{S_WM}, 1")
    A.e(f"s_add_u32 s{st}, s{st}, s{st+1}")
    A.e(f"v_and_b32 v{VA}, 31, v{V_LANE}")
    A.e(f"s_lshl_b32 s{st+1}, s{st}, 5")
    A.e(f"v_add_u32 v{VA}, s{st+1}, v{VA}")
    A.e(f"v_mul_u32_u24 v{VA}, {OH_STRIDE}, v{VA}")
    A.e(f"v_lshrrev_b32 v{VA+1}, 5, v{V_LANE}")
    A.e(f"v_lshl_add_u32 v{VA}, v{VA+1}, 4, v{VA}")
    A.e(f"s_mul_i32 s{st+1}, s{S_J}, 224")
    A.e(f"s_add_u32 s{st+1}, s{st+1}, {WS_OH + 2048}")
    A.e(f"v_add_u32 v{VA}, s{st+1}, v{VA}")
    A.e(f"v_add_u32 v{VA+1}, {32*OH_STRIDE}, v{VA}")
    if path == 0:
        A.e(f"s_lshl_b32 s{st+1}, s{S_J}, 6")
        A.e(f"s_add_u32 s{st+1}, s{st+1}, s{st}")
        A.e(f"s_lshl_b32 s{st+2}, s{st+1}, 11")
        A.e(f"s_add_u32 s{st+2}, s{st+2}, {WS_QF}")
        A.e(f"s_lshl_b32 s{st+3}, s{st+1}, 12")
        A.e(f"s_add_u32 s{st+3}, s{st+3}, {WS_KV}")
        A.e(f"v_lshlrev_b32 v{VA+2}, 4, v{V_LANE}")
        A.e(f"v_add_u32 v{VA+3}, s{st+3}, v{VA+2}")
        A.e(f"v_add_u32 v{VA+2}, s{st+2}, v{VA+2}")
        A.e(f"v_add_u32 v{VA+4}, 4096, v{VA+3}")
    A.e(f"s_mov_b32 s{S_C0}, {hex(f32bits(QSCALE))}")
    A.e(f"s_mov_b32 s{S_C0+1}, {hex(f32bits(-math.log2(math.e)))}")
    ws = f"s[{SRD_WS}:{SRD_WS+3}]"
    for bi, (kind, idx) in enumerate(blks):
        for mb in range(2):
            ac = acc(bi, mb)
            for r in range(16):
                A.e(f"v_accvgpr_read_b32 v{T+r}, a{ac+r}")
            if kind == "G":
                for r in range(8):
                    A.e(f"v_mul_f32 v{U+r}, s{S_C0+1}, v{T+r}")
                for r in range(8):
                    A.e(f"v_exp_f32 v{U+r}, v{U+r}")
                for r in range(8):
                    A.e(f"v_mul_f32 v{T+r}, v{T+r}, v{T+8+r}")
                for r in range(8):
                    A.e(f"v_add_f32 v{U+r}, 1.0, v{U+r}")
                for r in range(8):
                    A.e(f"v_rcp_f32 v{U+r}, v{U+r}")
                A.nop(1)
                for r in range(8):
                    A.e(f"v_mul_f32 v{T+r}, v{T+r}, v{U+r}")
                for r in range(4):
                    A.e(f"v_cvt_pk_bf16_f32 v{U+8+r}, v{T+2*r}, v{T+2*r+1}")
                A.e(f"buffer_store_dwordx4 {v(U+8,4)}, v{VA+mb}, {ws}, 0 offen offset:{idx*32}")
                A.nop(2)
            else:
                if kind == "Q":
                    for r in range(16):
                        A.e(f"v_mul_f32 v{T+r}, s{S_C0}, v{T+r}")
                for r in range(8):
                    A.e(f"v_cvt_pk_bf16_f32 v{U+r}, v{T+2*r}, v{T+2*r+1}")
                if kind == "Q":
                    for t in range(2):
                        A.e(f"buffer_store_dwordx4 {v(U+4*t,4)}, v{VA+2}, {ws}, 0 offen offset:{mb*2048 + t*1024}")
                else:
                    o = 0 if kind == "K" else 2048
                    for t in range(2):
                        A.e(f"buffer_store_dwordx4 {v(U+4*t,4)}, v{VA+3+mb}, {ws}, 0 offen offset:{o + t*1024}")
                A.nop(2)


def emit_path(A, path):
    dl = dma_list(path)
    n = len(dl)
    blks = blocks_of(path)
    if path == 0:
        setup_bslot(A, 0, 0)
        setup_bslot(A, 1, 4)
        setup_bslot(A, 2, 8)
    else:
        setup_bslot(A, 0, 12)
        setup_bslot(A, 1, 16)
    A.nop(4)
    for st in range(3):
        for op in dl:
            emit_dma_m0(A, op, st)
            A.nop(1)
            emit_dma(A, op)
        emit_dma_advance(A, path)
    for r in range(160):
        A.e(f"v_accvgpr_write_b32 a{r}, 0")
    A.e(f"s_mov_b32 s{S_CNT}, 0")
    A.e(f"s_waitcnt vmcnt({2*n})")
    A.e("s_barrier")
    emit_xreads(A, 0, 0, 0)
    for bi, blk in enumerate(blks):
        emit_wreads(A, bi, blk, 0, 0)
    loop = A.newlabel("loop")
    A.label(loop)
    for r in range(4):
        emit_stage(A, path, r, True, n, False)
    A.e(f"s_add_u32 s{S_CNT}, s{S_CNT}, 1")
    A.e(f"s_cmp_lt_u32 s{S_CNT}, 7")
    A.e(f"s_cbranch_scc1 {loop}")
    emit_stage(A, path, 0, True, n, False)
    emit_stage(A, path, 1, False, n, False)
    emit_stage(A, path, 2, False, 0, False)
    emit_stage(A, path, 3, False, None, True)
    emit_epilogue(A, path)
    A.e("s_endpgm")


def gen_k1():
    A = Asm("k1")
    done = "L_k1_done"
    A.e("s_cmp_ge_u32 s2, 256")
    A.e(f"s_cbranch_scc1 {done}")
    A.e(f"s_load_dwordx2 s[{S_WQKV}:{S_WQKV+1}], s[0:1], 8")
    A.e(f"s_load_dwordx2 s[{S_WG}:{S_WG+1}], s[0:1], 32")
    A.e(f"s_load_dwordx2 s[{S_WU}:{S_WU+1}], s[0:1], 40")
    A.e(f"s_load_dwordx2 s[{S_WS}:{S_WS+1}], s[0:1], 72")
    A.e(f"s_and_b32 s{S_J}, s2, 31")
    A.e(f"s_lshr_b32 s{S_I}, s2, 5")
    A.e(f"v_and_b32 v{V_LANE}, 63, v0")
    A.e(f"v_lshrrev_b32 v{V_T}, 6, v0")
    A.nop(1)
    A.e(f"v_readfirstlane_b32 s{S_W}, v{V_T}")
    A.nop(4)
    A.e(f"s_and_b32 s{S_WM}, s{S_W}, 3")
    t0, t1, t2 = V_T, V_T + 1, V_T + 2
    A.e(f"v_and_b32 v{t0}, 31, v{V_LANE}")
    A.e(f"s_lshl_b32 s{S_T}, s{S_WM}, 6")
    A.e(f"v_add_u32 v{t0}, s{S_T}, v{t0}")
    A.e(f"v_lshlrev_b32 v{t0}, 6, v{t0}")
    A.e(f"v_lshrrev_b32 v{t1}, 5, v{V_LANE}")
    A.e(f"v_bfe_u32 v{t2}, v{V_LANE}, 2, 2")
    A.e(f"v_xor_b32 v{t1}, v{t1}, v{t2}")
    A.e(f"v_lshl_add_u32 v{V_X[0]}, v{t1}, 4, v{t0}")
    A.e(f"v_xor_b32 v{t1}, 2, v{t1}")
    A.e(f"v_lshl_add_u32 v{V_X[1]}, v{t1}, 4, v{t0}")
    A.e(f"v_lshrrev_b32 v{t0}, 5, v{V_LANE}")
    A.e(f"v_lshlrev_b32 v{t0}, 3, v{t0}")
    A.e(f"v_bfe_u32 v{t1}, v{V_LANE}, 2, 2")
    A.e(f"v_add_u32 v{t0}, v{t0}, v{t1}")
    A.e(f"v_bfe_u32 v{t1}, v{V_LANE}, 4, 1")
    A.e(f"v_and_b32 v{t2}, 3, v{V_LANE}")
    A.e(f"v_lshlrev_b32 v{t2}, 3, v{t2}")
    A.e(f"v_mul_u32_u24 v{V_WQ}, 192, v{t0}")
    A.e(f"v_lshl_add_u32 v{V_WQ}, v{t1}, 5, v{V_WQ}")
    A.e(f"v_add_u32 v{V_WQ}, v{V_WQ}, v{t2}")
    A.e(f"v_add_u32 v{V_WQ}, {QKVA}, v{V_WQ}")
    A.e(f"v_mul_u32_u24 v{V_WG}, 224, v{t0}")
    A.e(f"v_mul_u32_u24 v{t1}, {GU_U}, v{t1}")
    A.e(f"v_add_u32 v{V_WG}, v{V_WG}, v{t1}")
    A.e(f"v_add_u32 v{V_WG}, v{V_WG}, v{t2}")
    A.e(f"v_add_u32 v{V_WG}, {GUA}, v{V_WG}")
    A.e(f"s_lshl_b32 s{S_T}, s{S_I}, 8")
    A.e(f"s_lshl_b32 s{S_T+1}, s{S_W}, 5")
    A.e(f"s_add_u32 s{S_T}, s{S_T}, s{S_T+1}")
    A.e(f"v_lshrrev_b32 v{t0}, 2, v{V_LANE}")
    A.e(f"v_add_u32 v{t0}, s{S_T}, v{t0}")
    A.e(f"v_lshlrev_b32 v{t0}, 11, v{t0}")
    A.e(f"v_and_b32 v{t1}, 3, v{V_LANE}")
    A.e(f"v_bfe_u32 v{t2}, v{V_LANE}, 4, 2")
    A.e(f"v_xor_b32 v{t1}, v{t1}, v{t2}")
    A.e(f"v_lshl_add_u32 v{V_OFFA[0]}, v{t1}, 4, v{t0}")
    A.e(f"v_add_u32 v{V_OFFA[1]}, {16*2048}, v{V_OFFA[0]}")
    assert WS_XN == 0
    A.e(f"s_lshl_b32 s{S_T}, s{S_W}, 11")
    for r in range(4):
        A.e(f"s_add_u32 s{S_M0A[0]+r}, s{S_T}, {XA + r*XA_SLOT}")
        A.e(f"s_add_u32 s{S_M0A[1]+r}, s{S_T}, {XA + r*XA_SLOT + 1024}")
    A.e(f"s_mov_b32 s{S_SOFFA}, 0")
    A.e("s_waitcnt lgkmcnt(0)")
    A.srd(SRD_WS, S_WS, WS_BYTES)
    p1 = "L_k1_path1"
    A.e(f"s_cmp_ge_u32 s{S_W}, 4")
    A.e(f"s_cbranch_scc1 {p1}")
    emit_path(A, 0)
    A.label(p1)
    emit_path(A, 1)
    A.label(done)
    A.e("s_endpgm")
    return A.text(), dict(vgpr=256, sgpr=96, accum=96, lds=LDS_BYTES)
```

```python
from asmlib import *
from layout import *

CHUNK = 32768
NSLOT = 4
LDS_BYTES = CHUNK * NSLOT
THRESH = 16384.0

S_WS = 4
SRD_WS = 8
S_J, S_QC, S_W = 12, 13, 14
S_SOFF = 15
S_M0 = 16
S_T = 18
S_TH = 24

V_LANE = 1
V_RD = 2
V_OFF = 3
V_T = 4
V_Q = 8
V_KF = 16
V_VF = 32
V_S = 56
V_E = 88
V_P = 104
V_O = 120
V_NM = 136
V_L = 152
V_TS = 153
V_DM = 161
V_RDH = 162
NV = 168


def kf(b):
    return V_KF + 8 * b


def vf(b):
    return V_VF + 8 * b


def sreg(b):
    return V_S + 16 * b


def preg(b):
    return V_P + 8 * b


def lds_off(t):
    return ((t // 8) % NSLOT) * CHUNK + (t % 8) * 4096


def rd_addr(o):
    if o >= 65536:
        return V_RDH, o - 65536
    return V_RD, o


def emit_kread(A, t, buf):
    r, o = rd_addr(lds_off(t))
    A.e(f"ds_read_b128 {v(kf(buf),4)}, v{r} offset:{o}")
    A.e(f"ds_read_b128 {v(kf(buf)+4,4)}, v{r} offset:{o+1024}")


def emit_vread(A, t, buf):
    r, o = rd_addr(lds_off(t))
    A.e(f"ds_read_b128 {v(vf(buf),4)}, v{r} offset:{o+2048}")
    A.e(f"ds_read_b128 {v(vf(buf)+4,4)}, v{r} offset:{o+3072}")


def softmax_ops(sb, pb):
    S = sreg(sb)
    E = V_E
    P = preg(pb)
    ops = []
    for g in range(4):
        for r in range(4):
            ops.append(f"v_exp_f32 v{E+4*g+r}, v{S+4*g+r}")
        if g > 0:
            q = g - 1
            ops.append(f"v_add_f32 v{V_TS+2*q}, v{E+4*q}, v{E+4*q+1}")
            ops.append(f"v_add_f32 v{V_TS+2*q+1}, v{E+4*q+2}, v{E+4*q+3}")
            ops.append(f"v_cvt_pk_bf16_f32 v{P+2*q}, v{E+4*q}, v{E+4*q+1}")
            ops.append(f"v_cvt_pk_bf16_f32 v{P+2*q+1}, v{E+4*q+2}, v{E+4*q+3}")
    ops.append(f"v_add_f32 v{V_TS}, v{V_TS}, v{V_TS+1}")
    ops.append(f"v_add_f32 v{V_TS+2}, v{V_TS+2}, v{V_TS+3}")
    q = 3
    ops.append(f"v_add_f32 v{V_TS+2*q}, v{E+4*q}, v{E+4*q+1}")
    ops.append(f"v_add_f32 v{V_TS+2*q+1}, v{E+4*q+2}, v{E+4*q+3}")
    ops.append(f"v_cvt_pk_bf16_f32 v{P+2*q}, v{E+4*q}, v{E+4*q+1}")
    ops.append(f"v_cvt_pk_bf16_f32 v{P+2*q+1}, v{E+4*q+2}, v{E+4*q+3}")
    ops.append(f"v_add_f32 v{V_TS+4}, v{V_TS+4}, v{V_TS+5}")
    ops.append(f"v_add_f32 v{V_TS+6}, v{V_TS+6}, v{V_TS+7}")
    ops.append(f"v_add_f32 v{V_TS}, v{V_TS}, v{V_TS+2}")
    ops.append(f"v_add_f32 v{V_TS+4}, v{V_TS+4}, v{V_TS+6}")
    ops.append(f"v_add_f32 v{V_TS}, v{V_TS}, v{V_TS+4}")
    ops.append(f"v_cmp_lt_f32 vcc, s{S_TH}, v{V_TS}")
    return ops


def emit_max16(A, S, dst, tmp):
    A.e(f"v_max3_f32 v{dst}, v{S}, v{S+1}, v{S+2}")
    for r in range(3, 15, 2):
        A.e(f"v_max3_f32 v{dst}, v{dst}, v{S+r}, v{S+r+1}")
    A.e(f"v_max_f32 v{dst}, v{dst}, v{S+15}")
    A.e(f"v_mov_b32 v{tmp}, v{dst}")
    A.nop(2)
    A.e(f"v_permlane32_swap_b32 v{dst}, v{tmp}")
    A.nop(2)
    A.e(f"v_max_f32 v{dst}, v{dst}, v{tmp}")


def emit_slow(A, label, back, sb, pb, has_next):
    S = sreg(sb)
    Sn = sreg(sb ^ 1)
    A.label(label)
    A.nop(32)
    emit_max16(A, S, V_DM, V_T)
    A.e(f"v_max_f32 v{V_DM}, 0, v{V_DM}")
    A.e(f"v_sub_f32 v{V_T}, 0, v{V_DM}")
    A.e(f"v_exp_f32 v{V_T}, v{V_T}")
    A.nop(2)
    for r in range(16):
        A.e(f"v_mul_f32 v{V_O+r}, v{V_O+r}, v{V_T}")
    A.e(f"v_mul_f32 v{V_L}, v{V_L}, v{V_T}")
    for r in range(16):
        A.e(f"v_sub_f32 v{V_NM+r}, v{V_NM+r}, v{V_DM}")
    for r in range(16):
        A.e(f"v_sub_f32 v{S+r}, v{S+r}, v{V_DM}")
    if has_next:
        for r in range(16):
            A.e(f"v_sub_f32 v{Sn+r}, v{Sn+r}, v{V_DM}")
    for op in softmax_ops(sb, pb)[:-1]:
        A.e(op)
    A.nop(4)
    A.e(f"s_branch {back}")


def emit_chunk_dma(A, slot):
    A.e(f"s_add_u32 m0, s{S_M0}, {slot*CHUNK}")
    A.nop(1)
    for u in range(4):
        A.e(f"buffer_load_dwordx4 v{V_OFF}, s[{SRD_WS}:{SRD_WS+3}], s{S_SOFF} offen offset:{u*1024} lds")
    A.e(f"s_add_u32 s{S_SOFF}, s{S_SOFF}, {CHUNK}")


def emit_tile(A, slow_list, t, barrier_vm, issue_slot):
    first = t == 0
    last = t == 63
    sb = t % 2
    pb = t % 2
    ops = softmax_ops(sb, pb)
    mf = []
    if not last:
        kb = (t + 1) % 2
        Sn = v(sreg(sb ^ 1), 16)
        mf.append(f"v_mfma_f32_32x32x16_bf16 {Sn}, {v(kf(kb),4)}, {v(V_Q,4)}, {v(V_NM,16)}")
        mf.append(f"v_mfma_f32_32x32x16_bf16 {Sn}, {v(kf(kb)+4,4)}, {v(V_Q+4,4)}, {Sn}")
    if not first:
        vb = (t - 1) % 3
        pp = preg(pb ^ 1)
        O = v(V_O, 16)
        mf.append(f"v_mfma_f32_32x32x16_bf16 {O}, {v(vf(vb),4)}, {v(pp,4)}, {O}")
        mf.append(f"v_mfma_f32_32x32x16_bf16 {O}, {v(vf(vb)+4,4)}, {v(pp+4,4)}, {O}")
    A.c(f"tile {t}")
    A.e("s_waitcnt lgkmcnt(0)")
    if barrier_vm is not None:
        A.e(f"s_waitcnt vmcnt({barrier_vm})")
        A.e("s_barrier")
    pos = [0, 10, 20, 30]
    k = 0
    for i, op in enumerate(ops):
        if k < len(mf) and i == pos[k]:
            A.e(mf[k])
            k += 1
        A.e(op)
        if i == 12:
            if t + 2 < 64:
                emit_kread(A, t + 2, t % 2)
            if t + 1 < 64:
                emit_vread(A, t + 1, (t + 1) % 3)
        if i == 22 and issue_slot is not None:
            emit_chunk_dma(A, issue_slot)
    assert k == len(mf)
    slow = A.newlabel("slow")
    back = A.newlabel("back")
    A.e(f"s_cbranch_vccnz {slow}")
    A.label(back)
    A.e(f"v_add_f32 v{V_L}, v{V_L}, v{V_TS}")
    slow_list.append((slow, back, sb, pb, not last))


def gen_k2():
    A = Asm("k2")
    done = "L_k2_done"
    A.e("s_cmp_ge_u32 s2, 256")
    A.e(f"s_cbranch_scc1 {done}")
    A.e(f"s_load_dwordx2 s[{S_WS}:{S_WS+1}], s[0:1], 72")
    A.e(f"s_and_b32 s{S_J}, s2, 31")
    A.e(f"s_lshr_b32 s{S_QC}, s2, 5")
    A.e(f"v_and_b32 v{V_LANE}, 63, v0")
    A.e(f"v_lshrrev_b32 v{V_T}, 6, v0")
    A.nop(1)
    A.e(f"v_readfirstlane_b32 s{S_W}, v{V_T}")
    A.nop(4)
    A.e(f"v_lshlrev_b32 v{V_RD}, 4, v{V_LANE}")
    A.e(f"v_add_u32 v{V_RDH}, 0x10000, v{V_RD}")
    A.e(f"s_lshl_b32 s{S_T}, s{S_J}, 18")
    A.e(f"s_lshl_b32 s{S_M0}, s{S_W}, 12")
    A.e(f"s_add_u32 s{S_T}, s{S_T}, s{S_M0}")
    A.e(f"s_add_u32 s{S_T}, s{S_T}, {WS_KV}")
    A.e(f"v_add_u32 v{V_OFF}, s{S_T}, v{V_RD}")
    A.e(f"s_mov_b32 s{S_SOFF}, 0")
    A.e(f"s_mov_b32 s{S_TH}, {hex(f32bits(THRESH))}")
    A.e(f"s_lshl_b32 s{S_T}, s{S_J}, 6")
    A.e(f"s_lshl_b32 s{S_T+1}, s{S_QC}, 3")
    A.e(f"s_add_u32 s{S_T}, s{S_T}, s{S_T+1}")
    A.e(f"s_add_u32 s{S_T}, s{S_T}, s{S_W}")
    A.e(f"s_lshl_b32 s{S_T}, s{S_T}, 11")
    A.e(f"s_add_u32 s{S_T}, s{S_T}, {WS_QF}")
    A.e(f"v_add_u32 v{V_T}, s{S_T}, v{V_RD}")
    A.e("s_waitcnt lgkmcnt(0)")
    A.srd(SRD_WS, S_WS, WS_BYTES)
    ws = f"s[{SRD_WS}:{SRD_WS+3}]"
    A.e(f"buffer_load_dwordx4 {v(V_Q,4)}, v{V_T}, {ws}, 0 offen")
    A.e(f"buffer_load_dwordx4 {v(V_Q+4,4)}, v{V_T}, {ws}, 0 offen offset:1024")
    for c in range(3):
        emit_chunk_dma(A, c)
    for r in range(16):
        A.e(f"v_mov_b32 v{V_O+r}, 0")
    A.e(f"v_mov_b32 v{V_L}, 0")
    A.e("s_waitcnt vmcnt(8)")
    A.e("s_barrier")
    emit_kread(A, 0, 0)
    emit_kread(A, 1, 1)
    emit_vread(A, 0, 0)
    A.e("s_waitcnt lgkmcnt(0)")
    S0 = v(sreg(0), 16)
    A.e(f"v_mfma_f32_32x32x16_bf16 {S0}, {v(kf(0),4)}, {v(V_Q,4)}, 0")
    A.e(f"v_mfma_f32_32x32x16_bf16 {S0}, {v(kf(0)+4,4)}, {v(V_Q+4,4)}, {S0}")
    A.nop(16)
    emit_max16(A, sreg(0), V_DM, V_T)
    for r in range(16):
        A.e(f"v_sub_f32 v{V_NM+r}, 0, v{V_DM}")
    for r in range(16):
        A.e(f"v_sub_f32 v{sreg(0)+r}, v{sreg(0)+r}, v{V_DM}")
    slow_list = []
    for t in range(64):
        bvm = None
        isl = None
        if (t + 2) % 8 == 0 and t + 2 < 64:
            c = (t + 2) // 8
            issued = min(c + 1, 7)
            bvm = 4 * (issued - c)
            if c + 2 < 8:
                isl = (c + 2) % NSLOT
        emit_tile(A, slow_list, t, bvm, isl)
    A.e("s_waitcnt lgkmcnt(0)")
    O = v(V_O, 16)
    vb = 63 % 3
    pp = preg(63 % 2)
    A.nop(2)
    A.e(f"v_mfma_f32_32x32x16_bf16 {O}, {v(vf(vb),4)}, {v(pp,4)}, {O}")
    A.e(f"v_mfma_f32_32x32x16_bf16 {O}, {v(vf(vb)+4,4)}, {v(pp+4,4)}, {O}")
    A.e(f"v_mov_b32 v{V_T}, v{V_L}")
    A.nop(2)
    A.e(f"v_permlane32_swap_b32 v{V_L}, v{V_T}")
    A.nop(2)
    A.e(f"v_add_f32 v{V_L}, v{V_L}, v{V_T}")
    A.e(f"v_rcp_f32 v{V_L}, v{V_L}")
    A.e(f"s_lshl_b32 s{S_T}, s{S_QC}, 3")
    A.e(f"s_add_u32 s{S_T}, s{S_T}, s{S_W}")
    A.e(f"s_lshl_b32 s{S_T}, s{S_T}, 5")
    A.e(f"v_and_b32 v{V_T}, 31, v{V_LANE}")
    A.e(f"v_add_u32 v{V_T}, s{S_T}, v{V_T}")
    A.e(f"v_mul_u32_u24 v{V_T}, {OH_STRIDE}, v{V_T}")
    A.e(f"v_lshrrev_b32 v{V_T+1}, 5, v{V_LANE}")
    A.e(f"v_lshl_add_u32 v{V_T}, v{V_T+1}, 4, v{V_T}")
    A.e(f"s_lshl_b32 s{S_T}, s{S_J}, 6")
    A.e(f"s_add_u32 s{S_T}, s{S_T}, {WS_OH}")
    A.e(f"v_add_u32 v{V_T}, s{S_T}, v{V_T}")
    A.nop(16)
    for r in range(16):
        A.e(f"v_mul_f32 v{V_O+r}, v{V_O+r}, v{V_L}")
    for r in range(8):
        A.e(f"v_cvt_pk_bf16_f32 v{V_E+r}, v{V_O+2*r}, v{V_O+2*r+1}")
    A.e(f"buffer_store_dwordx4 {v(V_E,4)}, v{V_T}, {ws}, 0 offen")
    A.e(f"buffer_store_dwordx4 {v(V_E+4,4)}, v{V_T}, {ws}, 0 offen offset:32")
    A.label(done)
    A.e("s_endpgm")
    for (slow, back, sb, pb, hn) in slow_list:
        emit_slow(A, slow, back, sb, pb, hn)
    return A.text(), dict(vgpr=NV, sgpr=32, accum=NV, lds=LDS_BYTES)
```

```python
from asmlib import *
from layout import *

AA = 0
A_SLOT = 32768
BA = 3 * A_SLOT
B_SLOT = 16384
LDS_BYTES = BA + 3 * B_SLOT
NST = 36

S_X, S_WO, S_WD, S_OUT, S_WS = 4, 6, 8, 10, 12
SRD_WS, SRD_B, SRD_X, SRD_OUT = 16, 20, 24, 28
S_I, S_JN, S_W, S_KQ, S_MH = 32, 33, 34, 35, 36
S_SOFFA, S_SOFFB, S_STG = 37, 38, 39
S_M0A, S_M0B = 40, 41
S_CNT = 42
S_WDHI = 43
S_T = 44

V_LANE = 1
V_XA = [2, 3]
V_XAH = [4, 5]
V_WA = [6, 7]
V_OFFA = [8, 9, 10, 11]
V_OFFB = [12, 13]
V_T = 14
V_XF = 20
V_WF = 36
V_ACC = 52
V_XR = 116
NV = 128


def acc(nb, mb):
    return V_ACC + (nb * 2 + mb) * 16


def emit_dma_stage(A, ring):
    ws = f"s[{SRD_WS}:{SRD_WS+3}]"
    A.e(f"s_cmp_eq_u32 s{S_STG}, 8")
    A.e(f"s_cselect_b32 s{SRD_B}, s{S_WD}, s{SRD_B}")
    A.e(f"s_cselect_b32 s{SRD_B+1}, s{S_WDHI}, s{SRD_B+1}")
    A.e(f"s_cselect_b32 s{SRD_B+2}, {3584*1024*2}, s{SRD_B+2}")
    A.e(f"s_cselect_b32 s{S_SOFFB}, 0, s{S_SOFFB}")
    for u in range(4):
        A.e(f"s_add_u32 m0, s{S_M0A}, {AA + ring*A_SLOT + u*1024}")
        A.nop(1)
        A.e(f"buffer_load_dwordx4 v{V_OFFA[u]}, {ws}, s{S_SOFFA} offen lds")
    for u in range(2):
        A.e(f"s_add_u32 m0, s{S_M0B}, {BA + ring*B_SLOT + u*1024}")
        A.nop(1)
        A.e(f"buffer_load_dwordx4 v{V_OFFB[u]}, s[{SRD_B}:{SRD_B+3}], s{S_SOFFB} offen lds")
    A.e(f"s_add_u32 s{S_SOFFA}, s{S_SOFFA}, 256")
    A.e(f"s_add_u32 s{S_SOFFB}, s{S_SOFFB}, {128*2048}")
    A.e(f"s_add_u32 s{S_STG}, s{S_STG}, 1")


def emit_stage(A, ring, issue, vmw):
    A.e(f"s_waitcnt vmcnt({vmw})")
    A.e("s_barrier")
    for s_ in range(2):
        for mb in range(2):
            o = AA + ring * A_SLOT + mb * 8192
            r = V_XA[s_]
            if o >= 65536:
                o -= 65536
                r = V_XAH[s_]
            A.e(f"ds_read_b128 {v(V_XF+(s_*2+mb)*4,4)}, v{r} offset:{o}")
        for nb in range(2):
            for rd in range(2):
                o = ring * B_SLOT + (16 * s_ + 8 * rd) * 128
                A.e(f"ds_read_b64_tr_b16 {v(V_WF+(s_*2+nb)*4+2*rd,2)}, v{V_WA[nb]} offset:{o}")
    if issue:
        emit_dma_stage(A, (ring + 2) % 3)
    for s_ in range(2):
        A.e(f"s_waitcnt lgkmcnt({6 if s_ == 0 else 0})")
        for nb in range(2):
            for mb in range(2):
                D = v(acc(nb, mb), 16)
                A.e(f"v_mfma_f32_32x32x16_bf16 {D}, {v(V_WF+(s_*2+nb)*4,4)}, {v(V_XF+(s_*2+mb)*4,4)}, {D}")


def gen_k3():
    A = Asm("k3")
    done = "L_k3_done"
    A.e("s_cmp_ge_u32 s2, 256")
    A.e(f"s_cbranch_scc1 {done}")
    A.e(f"s_load_dwordx2 s[{S_X}:{S_X+1}], s[0:1], 0")
    A.e(f"s_load_dwordx2 s[{S_WO}:{S_WO+1}], s[0:1], 16")
    A.e(f"s_load_dwordx2 s[{S_WD}:{S_WD+1}], s[0:1], 48")
    A.e(f"s_load_dwordx2 s[{S_OUT}:{S_OUT+1}], s[0:1], 56")
    A.e(f"s_load_dwordx2 s[{S_WS}:{S_WS+1}], s[0:1], 72")
    t = S_T
    A.e(f"s_and_b32 s{t}, s2, 7")
    A.e(f"s_lshr_b32 s{t+1}, s2, 3")
    A.e(f"s_lshr_b32 s{t+2}, s{t}, 1")
    A.e(f"s_lshl_b32 s{t+2}, s{t+2}, 2")
    A.e(f"s_and_b32 s{t+3}, s{t+1}, 3")
    A.e(f"s_add_u32 s{S_I}, s{t+2}, s{t+3}")
    A.e(f"s_and_b32 s{t+2}, s{t}, 1")
    A.e(f"s_lshl_b32 s{t+2}, s{t+2}, 3")
    A.e(f"s_lshr_b32 s{t+3}, s{t+1}, 2")
    A.e(f"s_add_u32 s{S_JN}, s{t+2}, s{t+3}")
    A.e(f"v_and_b32 v{V_LANE}, 63, v0")
    A.e(f"v_lshrrev_b32 v{V_T}, 6, v0")
    A.nop(1)
    A.e(f"v_readfirstlane_b32 s{S_W}, v{V_T}")
    A.nop(4)
    A.e(f"s_lshr_b32 s{S_KQ}, s{S_W}, 1")
    A.e(f"s_and_b32 s{S_MH}, s{S_W}, 1")
    t0, t1, t2, t3 = V_T, V_T + 1, V_T + 2, V_T + 3
    A.e(f"v_and_b32 v{t0}, 31, v{V_LANE}")
    A.e(f"s_lshl_b32 s{t}, s{S_MH}, 6")
    A.e(f"v_add_u32 v{t0}, s{t}, v{t0}")
    A.e(f"v_lshlrev_b32 v{t0}, 8, v{t0}")
    A.e(f"v_lshrrev_b32 v{t1}, 5, v{V_LANE}")
    A.e(f"s_lshl_b32 s{t}, s{S_KQ}, 2")
    A.e(f"v_add_u32 v{t1}, s{t}, v{t1}")
    A.e(f"v_and_b32 v{t2}, 15, v{V_LANE}")
    A.e(f"v_xor_b32 v{t1}, v{t1}, v{t2}")
    A.e(f"v_lshl_add_u32 v{V_XA[0]}, v{t1}, 4, v{t0}")
    A.e(f"v_xor_b32 v{t1}, 2, v{t1}")
    A.e(f"v_lshl_add_u32 v{V_XA[1]}, v{t1}, 4, v{t0}")
    A.e(f"v_add_u32 v{V_XAH[0]}, 0x10000, v{V_XA[0]}")
    A.e(f"v_add_u32 v{V_XAH[1]}, 0x10000, v{V_XA[1]}")
    A.e(f"v_lshrrev_b32 v{t0}, 5, v{V_LANE}")
    A.e(f"v_lshlrev_b32 v{t0}, 2, v{t0}")
    A.e(f"v_bfe_u32 v{t1}, v{V_LANE}, 2, 2")
    A.e(f"v_add_u32 v{t0}, v{t0}, v{t1}")
    A.e(f"s_lshl_b32 s{t}, s{S_KQ}, 5")
    A.e(f"v_add_u32 v{t0}, s{t}, v{t0}")
    A.e(f"v_lshlrev_b32 v{t0}, 7, v{t0}")
    A.e(f"v_bfe_u32 v{t2}, v{V_LANE}, 4, 1")
    A.e(f"v_lshl_add_u32 v{t0}, v{t2}, 5, v{t0}")
    A.e(f"v_and_b32 v{t2}, 3, v{V_LANE}")
    A.e(f"v_lshl_add_u32 v{t0}, v{t2}, 3, v{t0}")
    A.e(f"v_add_u32 v{t0}, {BA}, v{t0}")
    A.e(f"v_lshrrev_b32 v{t1}, 1, v{t1}")
    A.e(f"v_lshl_add_u32 v{V_WA[0]}, v{t1}, 6, v{t0}")
    A.e(f"v_xor_b32 v{t1}, 1, v{t1}")
    A.e(f"v_lshl_add_u32 v{V_WA[1]}, v{t1}, 6, v{t0}")
    A.e(f"s_lshl_b32 s{t}, s{S_I}, 7")
    A.e(f"s_lshl_b32 s{t+1}, s{S_W}, 4")
    A.e(f"s_add_u32 s{t}, s{t}, s{t+1}")
    A.e(f"v_lshrrev_b32 v{t0}, 4, v{V_LANE}")
    A.e(f"v_and_b32 v{t1}, 15, v{V_LANE}")
    for u in range(4):
        A.e(f"v_add_u32 v{t2}, {4*u}, v{t0}")
        A.e(f"v_xor_b32 v{t3}, v{t1}, v{t2}")
        A.e(f"v_add_u32 v{t2}, s{t}, v{t2}")
        A.e(f"v_mul_u32_u24 v{t2}, {OH_STRIDE}, v{t2}")
        A.e(f"v_lshl_add_u32 v{t2}, v{t3}, 4, v{t2}")
        A.e(f"v_add_u32 v{V_OFFA[u]}, {WS_OH}, v{t2}")
    A.e(f"v_lshrrev_b32 v{t0}, 3, v{V_LANE}")
    A.e(f"v_add_u32 v{t0}, s{t+1}, v{t0}")
    A.e(f"v_lshlrev_b32 v{t0}, 11, v{t0}")
    A.e(f"v_bfe_u32 v{t1}, v{V_LANE}, 2, 1")
    A.e(f"v_bfe_u32 v{t2}, v{V_LANE}, 4, 1")
    A.e(f"v_xor_b32 v{t1}, v{t1}, v{t2}")
    A.e(f"v_lshl_add_u32 v{t0}, v{t1}, 6, v{t0}")
    A.e(f"v_and_b32 v{t1}, 3, v{V_LANE}")
    A.e(f"v_lshl_add_u32 v{t0}, v{t1}, 4, v{t0}")
    A.e(f"s_lshl_b32 s{t+2}, s{S_JN}, 7")
    A.e(f"v_add_u32 v{V_OFFB[0]}, s{t+2}, v{t0}")
    A.e(f"v_add_u32 v{V_OFFB[1]}, {8*2048}, v{V_OFFB[0]}")
    A.e(f"s_lshl_b32 s{S_M0A}, s{S_W}, 12")
    A.e(f"s_lshl_b32 s{S_M0B}, s{S_W}, 11")
    A.e(f"s_mov_b32 s{S_SOFFA}, 0")
    A.e(f"s_mov_b32 s{S_SOFFB}, 0")
    A.e(f"s_mov_b32 s{S_STG}, 0")
    A.e(f"s_mov_b32 s{S_CNT}, 0")
    A.e("s_waitcnt lgkmcnt(0)")
    A.srd(SRD_WS, S_WS, WS_BYTES)
    A.srd(SRD_B, S_WO, 1024 * 1024 * 2)
    A.srd(SRD_X, S_X, 2048 * 1024 * 2)
    A.srd(SRD_OUT, S_OUT, 2048 * 1024 * 2)
    A.e(f"s_and_b32 s{S_WDHI}, s{S_WD+1}, 0xffff")
    emit_dma_stage(A, 0)
    emit_dma_stage(A, 1)
    for r in range(64):
        A.e(f"v_mov_b32 v{V_ACC+r}, 0")
    loop = A.newlabel("loop")
    A.label(loop)
    for r in range(3):
        emit_stage(A, r, True, 6)
    A.e(f"s_add_u32 s{S_CNT}, s{S_CNT}, 1")
    A.e(f"s_cmp_lt_u32 s{S_CNT}, 11")
    A.e(f"s_cbranch_scc1 {loop}")
    emit_stage(A, 0, True, 6)
    emit_stage(A, 1, False, 6)
    emit_stage(A, 2, False, 0)
    A.e(f"s_lshr_b32 s{t}, s{S_KQ}, 1")
    A.e(f"s_and_b32 s{t+1}, s{S_KQ}, 1")
    A.e(f"s_lshl_b32 s{t+2}, s{S_I}, 7")
    A.e(f"s_lshl_b32 s{t+3}, s{S_MH}, 6")
    A.e(f"s_add_u32 s{t+2}, s{t+2}, s{t+3}")
    A.e(f"s_lshl_b32 s{t+3}, s{t+1}, 5")
    A.e(f"s_add_u32 s{t+2}, s{t+2}, s{t+3}")
    A.e(f"v_and_b32 v{t0}, 31, v{V_LANE}")
    A.e(f"v_add_u32 v{t0}, s{t+2}, v{t0}")
    A.e(f"v_lshlrev_b32 v{t0}, 11, v{t0}")
    A.e(f"v_lshrrev_b32 v{t1}, 5, v{V_LANE}")
    A.e(f"v_lshl_add_u32 v{t0}, v{t1}, 3, v{t0}")
    A.e(f"s_lshl_b32 s{t+2}, s{S_JN}, 7")
    A.e(f"s_lshl_b32 s{t+3}, s{t}, 6")
    A.e(f"s_add_u32 s{t+2}, s{t+2}, s{t+3}")
    A.e(f"v_add_u32 v{t0}, s{t+2}, v{t0}")
    for g in range(4):
        A.e(f"buffer_load_dwordx2 {v(V_XR+2*g,2)}, v{t0}, s[{SRD_X}:{SRD_X+3}], 0 offen offset:{g*16}")
    A.e(f"v_lshlrev_b32 v{t1}, 4, v{V_LANE}")
    A.e(f"s_lshl_b32 s{t+2}, s{S_W}, 14")
    A.e(f"v_add_u32 v{t2}, s{t+2}, v{t1}")
    A.e(f"s_lshl_b32 s{t+2}, s{S_MH}, 14")
    A.e(f"s_lshl_b32 s{t+3}, s{S_KQ}, 12")
    A.e(f"s_add_u32 s{t+2}, s{t+2}, s{t+3}")
    A.e(f"v_add_u32 v{t3}, s{t+2}, v{t1}")
    A.e(f"v_add_u32 v{t1}, 0x10000, v{t3}")
    A.e("s_barrier")
    A.nop(16)
    for blk in range(4):
        for g in range(4):
            A.e(f"ds_write_b128 v{t2}, {v(V_ACC+blk*16+g*4,4)} offset:{(blk*4+g)*1024}")
    A.e("s_waitcnt lgkmcnt(0)")
    A.e("s_barrier")
    for kq in range(4):
        for g in range(4):
            o = kq * 32768 + g * 1024
            r = t3
            if o >= 65536:
                o -= 65536
                r = t1
            A.e(f"ds_read_b128 {v(V_ACC+kq*16+g*4,4)}, v{r} offset:{o}")
    A.e("s_waitcnt lgkmcnt(0)")
    for r in range(16):
        A.e(f"v_add_f32 v{V_ACC+r}, v{V_ACC+r}, v{V_ACC+16+r}")
        A.e(f"v_add_f32 v{V_ACC+32+r}, v{V_ACC+32+r}, v{V_ACC+48+r}")
    A.e(f"s_mov_b32 s{t}, 0xffff0000")
    A.e("s_waitcnt vmcnt(0)")
    for r in range(16):
        A.e(f"v_add_f32 v{V_ACC+r}, v{V_ACC+r}, v{V_ACC+32+r}")
    for q in range(8):
        A.e(f"v_lshlrev_b32 v{V_ACC+16+2*q}, 16, v{V_XR+q}")
        A.e(f"v_and_b32 v{V_ACC+17+2*q}, s{t}, v{V_XR+q}")
    for r in range(16):
        A.e(f"v_add_f32 v{V_ACC+r}, v{V_ACC+r}, v{V_ACC+16+r}")
    for q in range(8):
        A.e(f"v_cvt_pk_bf16_f32 v{V_XR+q}, v{V_ACC+2*q}, v{V_ACC+2*q+1}")
    for g in range(4):
        A.e(f"buffer_store_dwordx2 {v(V_XR+2*g,2)}, v{t0}, s[{SRD_OUT}:{SRD_OUT+3}], 0 offen offset:{g*16}")
    A.label(done)
    A.e("s_endpgm")
    return A.text(), dict(vgpr=NV, sgpr=64, accum=NV, lds=LDS_BYTES)
```

```python
import sys, os
sys.path.insert(0, os.path.dirname(os.path.abspath(__file__)))
from asmlib import *
from k0_ln import gen_k0
from k1_gemm1 import gen_k1
from k2_attn import gen_k2
from k3_gemm2 import gen_k3

HEADER = open("parallel_sum__mha_block__swiglu_ffn__prompt.s.ref").read().split("; Override launch")[0]

def build(out):
    ks = [("ln_kernel", gen_k0(), 512, 256),
          ("gemm1_kernel", gen_k1(), 256, 512),
          ("attn_kernel", gen_k2(), 256, 512),
          ("gemm2_kernel", gen_k3(), 256, 512)]
    txt = HEADER
    for name, (body, m), grid, blk in ks:
        txt += f"; @launch kernel={name} grid=({grid},1,1) block=({blk},1,1) lds={m.get('lds',0)}\n"
    txt += '.amdgcn_target "amdgcn-amd-amdhsa--gfx950"\n.text\n'
    for name, (body, m), grid, blk in ks:
        txt += kernel_wrap(name, body, m['vgpr'], m['sgpr'], m['accum'])
    txt += '.section .rodata,"a"\n'
    for name, (body, m), grid, blk in ks:
        txt += kernel_desc(name, m['vgpr'], m['sgpr'], m['accum'])
    open(out, "w").write(txt)

if __name__ == "__main__":
    out = sys.argv[1] if len(sys.argv) > 1 else "parallel_sum__mha_block__swiglu_ffn__prompt.s"
    build(out)
    print("wrote", out, os.path.getsize(out))
```

```python
import struct
STAMP = [False]


def f32bits(x):
    return struct.unpack("<I", struct.pack("<f", x))[0]


def v(i, n=1):
    return f"v{i}" if n == 1 else f"v[{i}:{i+n-1}]"


def a(i, n=1):
    return f"a{i}" if n == 1 else f"a[{i}:{i+n-1}]"


def s(i, n=1):
    return f"s{i}" if n == 1 else f"s[{i}:{i+n-1}]"


class Asm:
    def __init__(self, name):
        self.name = name
        self.lines = []
        self.nlabel = 0

    def e(self, txt):
        self.lines.append("    " + txt)

    def c(self, txt):
        self.lines.append("    ; " + txt)

    def label(self, l):
        self.lines.append(l + ":")

    def newlabel(self, base):
        self.nlabel += 1
        return f"L_{self.name}_{base}_{self.nlabel}"

    def text(self):
        return "\n".join(self.lines)

    def srd(self, d, base, nbytes):
        self.e(f"s_mov_b32 s{d}, s{base}")
        self.e(f"s_and_b32 s{d+1}, s{base+1}, 0xffff")
        self.e(f"s_mov_b32 s{d+2}, {nbytes}")
        self.e(f"s_mov_b32 s{d+3}, 0x00020000")

    def stamp_begin(self, sb):
        if not STAMP[0]:
            return
        self.e(f"s_memtime s[{sb}:{sb+1}]")
        self.e(f"s_memrealtime s[{sb+2}:{sb+3}]")
        self.e("s_waitcnt lgkmcnt(0)")

    def stamp_end(self, sb, srd, vt, slot):
        if not STAMP[0]:
            return
        self.e("s_waitcnt vmcnt(0) lgkmcnt(0)")
        self.e(f"s_memtime s[{sb+4}:{sb+5}]")
        self.e(f"s_memrealtime s[{sb+6}:{sb+7}]")
        self.e("s_waitcnt lgkmcnt(0)")
        self.e(f"v_mov_b32 v{vt}, s{sb}")
        self.e(f"v_mov_b32 v{vt+1}, s{sb+2}")
        self.e(f"v_mov_b32 v{vt+2}, s{sb+4}")
        self.e(f"v_mov_b32 v{vt+3}, s{sb+6}")
        self.e(f"v_lshrrev_b32 v{vt+4}, 6, v0")
        self.e(f"s_lshl_b32 s{sb}, s2, 3")
        self.e(f"v_add_u32 v{vt+4}, s{sb}, v{vt+4}")
        self.e(f"v_lshlrev_b32 v{vt+4}, 4, v{vt+4}")
        self.e(f"v_add_u32 v{vt+4}, {200*(1<<20) + slot*65536}, v{vt+4}")
        self.e(f"buffer_store_dwordx4 v[{vt}:{vt+3}], v{vt+4}, s[{srd}:{srd+3}], 0 offen")

    def nop(self, n):
        while n > 0:
            k = min(n, 16)
            self.e(f"s_nop {k-1}")
            n -= k


def kernel_wrap(name, body, vgpr, sgpr, accum):
    return f""".globl {name}
.p2align 8
.type {name},@function
{name}:
{body}
"""


def kernel_desc(name, vgpr, sgpr, accum):
    return f""".p2align 6
.amdhsa_kernel {name}
  .amdhsa_next_free_vgpr {vgpr}
  .amdhsa_next_free_sgpr {sgpr}
  .amdhsa_accum_offset {accum}
  .amdhsa_group_segment_fixed_size 0
  .amdhsa_kernarg_size 80
  .amdhsa_user_sgpr_count 2
  .amdhsa_user_sgpr_kernarg_segment_ptr 1
  .amdhsa_system_sgpr_workgroup_id_x 1
.end_amdhsa_kernel
"""
```

```python
from asmlib import *
from layout import *


def wave_reduce_add(A, r, tmp, sbase):
    A.nop(2)
    A.e(f"v_add_f32 v{r}, v{r}, v{r} quad_perm:[1,0,3,2] row_mask:0xf bank_mask:0xf")
    A.nop(2)
    A.e(f"v_add_f32 v{r}, v{r}, v{r} quad_perm:[2,3,0,1] row_mask:0xf bank_mask:0xf")
    A.nop(2)
    A.e(f"v_add_f32 v{r}, v{r}, v{r} row_half_mirror row_mask:0xf bank_mask:0xf")
    A.nop(2)
    A.e(f"v_add_f32 v{r}, v{r}, v{r} row_mirror row_mask:0xf bank_mask:0xf")
    A.nop(2)
    for k in range(4):
        A.e(f"v_readlane_b32 s{sbase+k}, v{r}, {16*k}")
    A.nop(2)
    A.e(f"v_mov_b32 v{tmp}, s{sbase}")
    for k in range(1, 4):
        A.e(f"v_add_f32 v{tmp}, s{sbase+k}, v{tmp}")


def gen_k0(PF=True):
    A = Asm("k0")
    done = "L_k0_done"
    A.e("s_cmp_ge_u32 s2, 512")
    A.e(f"s_cbranch_scc1 {done}")
    A.e("s_load_dwordx2 s[4:5], s[0:1], 0")
    A.e("s_load_dwordx2 s[6:7], s[0:1], 72")
    if PF:
        A.e("s_load_dwordx2 s[26:27], s[0:1], 8")
        A.e("s_load_dwordx2 s[28:29], s[0:1], 32")
        A.e("s_load_dwordx2 s[30:31], s[0:1], 40")
    A.e("v_and_b32 v1, 63, v0")
    A.e("v_lshrrev_b32 v2, 6, v0")
    A.e("s_lshl_b32 s3, s2, 2")
    A.e("v_add_u32 v2, s3, v2")
    A.e("v_lshlrev_b32 v2, 11, v2")
    A.e("v_lshl_add_u32 v2, v1, 4, v2")
    A.e("s_waitcnt lgkmcnt(0)")
    A.srd(8, 4, 2048 * 1024 * 2)
    A.srd(12, 6, WS_BYTES)
    A.e("buffer_load_dwordx4 v[4:7], v2, s[8:11], 0 offen")
    A.e("buffer_load_dwordx4 v[8:11], v2, s[8:11], 0 offen offset:1024")
    A.e("s_mov_b32 s24, 0xffff0000")
    npf = 0
    if PF:
        A.srd(32, 26, 1024 * 3072 * 2)
        A.srd(36, 28, 1024 * 3584 * 2)
        A.srd(40, 30, 1024 * 3584 * 2)
        A.e("v_lshrrev_b32 v3, 6, v0")
        A.e("v_add_u32 v3, s3, v3")
        A.e("v_mul_u32_u24 v12, 3072, v3")
        A.e("v_lshl_add_u32 v12, v1, 4, v12")
        A.e("v_lshlrev_b32 v13, 12, v3")
        A.e("v_lshl_add_u32 v13, v1, 4, v13")
        for u in range(3):
            A.e(f"buffer_load_dwordx4 v[{64+4*u}:{67+4*u}], v12, s[32:35], 0 offen offset:{u*1024}")
        for u in range(4):
            A.e(f"buffer_load_dwordx4 v[{76+4*u}:{79+4*u}], v13, s[36:39], 0 offen offset:{u*1024}")
        for u in range(4):
            A.e(f"buffer_load_dwordx4 v[{92+4*u}:{95+4*u}], v13, s[40:43], 0 offen offset:{u*1024}")
        npf = 11
    A.e(f"s_waitcnt vmcnt({npf})")
    for i in range(8):
        A.e(f"v_lshlrev_b32 v{16+2*i}, 16, v{4+i}")
        A.e(f"v_and_b32 v{17+2*i}, s24, v{4+i}")
    for i in range(8):
        A.e(f"v_add_f32 v{32+i}, v{16+2*i}, v{17+2*i}")
    for i in range(4):
        A.e(f"v_add_f32 v{32+i}, v{32+i}, v{36+i}")
    A.e("v_add_f32 v32, v32, v34")
    A.e("v_add_f32 v33, v33, v35")
    A.e("v_add_f32 v40, v32, v33")
    wave_reduce_add(A, 40, 41, 16)
    A.e(f"v_mul_f32 v41, {hex(f32bits(1.0/1024))}, v41")
    for i in range(16):
        A.e(f"v_sub_f32 v{48+i}, v{16+i}, v41")
    for i in range(4):
        A.e(f"v_mul_f32 v{32+i}, v{48+i}, v{48+i}")
    for i in range(4, 16):
        A.e(f"v_fmac_f32 v{32+(i%4)}, v{48+i}, v{48+i}")
    A.e("v_add_f32 v32, v32, v33")
    A.e("v_add_f32 v34, v34, v35")
    A.e("v_add_f32 v40, v32, v34")
    wave_reduce_add(A, 40, 42, 16)
    A.e(f"v_mul_f32 v42, {hex(f32bits(1.0/1024))}, v42")
    A.e("v_cvt_pk_bf16_f32 v43, v41, v42")
    A.e("v_lshlrev_b32 v44, 16, v43")
    A.e("v_and_b32 v45, s24, v43")
    A.e(f"v_add_f32 v45, {hex(f32bits(1e-5))}, v45")
    A.e("v_cvt_pk_bf16_f32 v45, v45, v45")
    A.e("v_and_b32 v45, s24, v45")
    A.e("v_sqrt_f32 v45, v45")
    A.nop(1)
    A.e("v_cvt_pk_bf16_f32 v45, v45, v45")
    A.e("v_and_b32 v45, s24, v45")
    A.e("v_rcp_f32 v45, v45")
    for i in range(16):
        A.e(f"v_sub_f32 v{48+i}, v{16+i}, v44")
    for i in range(8):
        A.e(f"v_cvt_pk_bf16_f32 v{32+i}, v{48+2*i}, v{49+2*i}")
    for i in range(8):
        A.e(f"v_lshlrev_b32 v{48+2*i}, 16, v{32+i}")
        A.e(f"v_and_b32 v{49+2*i}, s24, v{32+i}")
    for i in range(16):
        A.e(f"v_mul_f32 v{48+i}, v{48+i}, v45")
    for i in range(8):
        A.e(f"v_cvt_pk_bf16_f32 v{4+i}, v{48+2*i}, v{49+2*i}")
    assert WS_XN == 0
    A.e("buffer_store_dwordx4 v[4:7], v2, s[12:15], 0 offen")
    A.e("buffer_store_dwordx4 v[8:11], v2, s[12:15], 0 offen offset:1024")
    A.label(done)
    A.e("s_endpgm")
    return A.text(), dict(vgpr=112, sgpr=48, accum=112)
```

```python
from asmlib import *
from layout import *

XA = 0
XA_SLOT = 16384
QKVA = 65536
QKV_SLOT = 6144
GUA = QKVA + 4 * QKV_SLOT
GU_U = 7296
GU_SLOT = 14592
LDS_BYTES = GUA + 4 * GU_SLOT

NST = 32

S_WQKV, S_WG, S_WU, S_WS = 4, 6, 8, 10
SRD_WS = 12
SRD_B = [16, 20, 24]
S_J, S_I, S_W, S_WM = 28, 29, 30, 31
S_SOFFA = 32
S_SOFFB = [33, 34, 35]
S_STRB = [36, 37, 38]
S_M0A = [40, 44]
S_M0B = [48, 52, 56]
S_CNT = 60
S_T = 62
S_C0 = 72

V_LANE = 1
V_X = [2, 3]
V_WQ, V_WG = 4, 5
V_OFFA = [6, 7]
V_OFFB = [8, 9, 10]
V_T = 11
V_XF = 16
V_WF = 32
V_E = 52


def xf(buf, mb):
    return V_XF + (buf * 2 + mb) * 4


def wf(b):
    return V_WF + b * 4


def acc(b, mb):
    return (b * 2 + mb) * 16


def setup_bslot(A, slot, tbase):
    t, tl, tmp = S_T, S_T + 1, S_T + 2
    d = SRD_B[slot]
    A.c(f"B slot {slot} setup, t = {tbase} + wm")
    A.e(f"s_add_u32 s{t}, s{S_WM}, {tbase}")
    A.e(f"s_sub_u32 s{tl}, s{t}, 6")
    A.e(f"s_mov_b32 s{d}, s{S_WG}")
    A.e(f"s_and_b32 s{d+1}, s{S_WG+1}, 0xffff")
    A.e(f"s_mov_b32 s{d+2}, {1024*3584*2}")
    A.e(f"s_mov_b32 s{d+3}, 0x00020000")
    A.e(f"s_mov_b32 s{S_STRB[slot]}, {32*7168}")
    A.e(f"s_mov_b32 s{tmp}, {GUA}")
    A.e(f"s_mov_b32 s{tmp+1}, {GU_SLOT}")
    A.e(f"s_and_b32 s{tmp+2}, s{S_WU+1}, 0xffff")
    A.e(f"s_sub_u32 s{tmp+3}, s{t}, 13")
    A.e(f"s_cmp_ge_u32 s{t}, 13")
    A.e(f"s_cselect_b32 s{tl}, s{tmp+3}, s{tl}")
    A.e(f"s_cselect_b32 s{d}, s{S_WU}, s{d}")
    A.e(f"s_cselect_b32 s{d+1}, s{tmp+2}, s{d+1}")
    A.e(f"s_cselect_b32 s{tmp}, {GUA+GU_U}, s{tmp}")
    A.e(f"s_and_b32 s{tmp+2}, s{S_WQKV+1}, 0xffff")
    A.e(f"s_cmp_lt_u32 s{t}, 6")
    A.e(f"s_cselect_b32 s{tl}, s{t}, s{tl}")
    A.e(f"s_cselect_b32 s{d}, s{S_WQKV}, s{d}")
    A.e(f"s_cselect_b32 s{d+1}, s{tmp+2}, s{d+1}")
    A.e(f"s_cselect_b32 s{d+2}, {1024*3072*2}, s{d+2}")
    A.e(f"s_cselect_b32 s{S_STRB[slot]}, {32*6144}, s{S_STRB[slot]}")
    A.e(f"s_cselect_b32 s{tmp}, {QKVA}, s{tmp}")
    A.e(f"s_cselect_b32 s{tmp+1}, {QKV_SLOT}, s{tmp+1}")
    A.e(f"s_cselect_b64 s[{tmp+4}:{tmp+5}], -1, 0")
    A.e(f"s_lshl_b32 s{tmp+2}, s{tl}, 10")
    A.e(f"s_add_u32 s{S_M0B[slot]}, s{tmp}, s{tmp+2}")
    for r in range(1, 4):
        A.e(f"s_add_u32 s{S_M0B[slot]+r}, s{S_M0B[slot]+r-1}, s{tmp+1}")
    A.e(f"s_mov_b32 s{S_SOFFB[slot]}, 0")
    idx, k, c, o1, o2 = V_T, V_T + 1, V_T + 2, V_T + 3, V_T + 4
    A.e(f"s_lshl_b32 s{tmp+2}, s{tl}, 6")
    A.e(f"v_add_u32 v{idx}, s{tmp+2}, v{V_LANE}")
    A.e(f"v_mul_u32_u24 v{k}, 5462, v{idx}")
    A.e(f"v_lshrrev_b32 v{k}, 16, v{k}")
    A.e(f"v_mul_u32_u24 v{c}, 12, v{k}")
    A.e(f"v_sub_u32 v{c}, v{idx}, v{c}")
    A.e(f"v_mul_u32_u24 v{o1}, 6144, v{k}")
    A.e(f"v_lshrrev_b32 v{k}, 2, v{c}")
    A.e(f"v_lshl_add_u32 v{o1}, v{k}, 11, v{o1}")
    A.e(f"v_and_b32 v{k}, 3, v{c}")
    A.e(f"v_lshl_add_u32 v{o1}, v{k}, 4, v{o1}")
    A.e(f"s_lshl_b32 s{tmp+2}, s{S_J}, 6")
    A.e(f"v_add_u32 v{o1}, s{tmp+2}, v{o1}")
    A.e(f"v_mul_u32_u24 v{k}, 4682, v{idx}")
    A.e(f"v_lshrrev_b32 v{k}, 16, v{k}")
    A.e(f"v_mul_u32_u24 v{c}, 14, v{k}")
    A.e(f"v_sub_u32 v{c}, v{idx}, v{c}")
    A.e(f"v_mul_u32_u24 v{o2}, 7168, v{k}")
    A.e(f"v_lshl_add_u32 v{o2}, v{c}, 4, v{o2}")
    A.e(f"s_mul_i32 s{tmp+2}, s{S_J}, 224")
    A.e(f"v_add_u32 v{o2}, s{tmp+2}, v{o2}")
    A.e(f"v_cndmask_b32 v{V_OFFB[slot]}, v{o2}, v{o1}, s[{tmp+4}:{tmp+5}]")


def dma_list(path):
    l = [("A", 0), ("A", 1), ("B", 0), ("B", 1)]
    if path == 0:
        l.append(("B", 2))
    return l


def emit_dma_m0(A, op, ring):
    kind, i = op
    sreg = (S_M0A[i] if kind == "A" else S_M0B[i]) + ring
    A.e(f"s_mov_b32 m0, s{sreg}")


def emit_dma(A, op):
    kind, i = op
    if kind == "A":
        A.e(f"buffer_load_dwordx4 v{V_OFFA[i]}, s[{SRD_WS}:{SRD_WS+3}], s{S_SOFFA} offen lds")
    else:
        d = SRD_B[i]
        A.e(f"buffer_load_dwordx4 v{V_OFFB[i]}, s[{d}:{d+3}], s{S_SOFFB[i]} offen lds")


def emit_dma_advance(A, path):
    A.e(f"s_add_u32 s{S_SOFFA}, s{S_SOFFA}, 64")
    for (kind, i) in dma_list(path):
        if kind == "B":
            A.e(f"s_add_u32 s{S_SOFFB[i]}, s{S_SOFFB[i]}, s{S_STRB[i]}")


def blocks_of(path):
    if path == 0:
        return [("Q", 0), ("K", 1), ("V", 2), ("G", 0), ("G", 1)]
    return [("G", 2), ("G", 3), ("G", 4), ("G", 5), ("G", 6)]


def emit_xreads(A, buf, ring, s_):
    for mb in range(2):
        A.e(f"ds_read_b128 {v(xf(buf, mb), 4)}, v{V_X[s_]} offset:{XA + ring*XA_SLOT + mb*2048}")


def emit_wreads(A, bi, blk, ring, s_):
    kind, idx = blk
    for rd in range(2):
        if kind == "G":
            off = ring * GU_SLOT + (16 * s_ + 4 * rd) * 224 + idx * 32
            A.e(f"ds_read_b64_tr_b16 {v(wf(bi)+2*rd, 2)}, v{V_WG} offset:{off}")
        else:
            off = ring * QKV_SLOT + (16 * s_ + 4 * rd) * 192 + idx * 64
            A.e(f"ds_read_b64_tr_b16 {v(wf(bi)+2*rd, 2)}, v{V_WQ} offset:{off}")


def emit_mfma(A, bi, blk, mb, buf):
    kind, _ = blk
    D = a(acc(bi, mb), 16)
    W = v(wf(bi), 4)
    X = v(xf(buf, mb), 4)
    if kind == "V":
        A.e(f"v_mfma_f32_32x32x16_bf16 {D}, {X}, {W}, {D}")
    else:
        A.e(f"v_mfma_f32_32x32x16_bf16 {D}, {W}, {X}, {D}")


def emit_stage(A, path, ring, issue_dma, vm_wait, last):
    blks = blocks_of(path)
    dl = dma_list(path)
    nb = len(blks)
    for s_ in range(2):
        has_next = not (last and s_ == 1)
        nring = ring if s_ == 0 else (ring + 1) % 4
        ns = s_ ^ 1
        if s_ == 1 and has_next:
            A.e(f"s_waitcnt vmcnt({vm_wait})")
            A.e("s_barrier")
        if has_next:
            emit_xreads(A, ns, nring, ns)
        for bi, blk in enumerate(blks):
            cnt = 10 if has_next else 2 * (nb - 1 - bi)
            A.e(f"s_waitcnt lgkmcnt({cnt})")
            do_dma = s_ == 1 and issue_dma and bi < len(dl)
            if do_dma:
                emit_dma_m0(A, dl[bi], (ring + 3) % 4)
            emit_mfma(A, bi, blk, 0, s_)
            if do_dma:
                emit_dma(A, dl[bi])
            emit_mfma(A, bi, blk, 1, s_)
            if has_next:
                emit_wreads(A, bi, blk, nring, ns)
        if s_ == 1 and issue_dma:
            emit_dma_advance(A, path)


def emit_epilogue(A, path):
    blks = blocks_of(path)
    T = V_E
    U = V_E + 16
    VA = V_E + 32
    A.c("epilogue")
    A.nop(16)
    st = S_T
    A.e(f"s_lshl_b32 s{st}, s{S_I}, 3")
    A.e(f"s_lshl_b32 s{st+1}, s{S_WM}, 1")
    A.e(f"s_add_u32 s{st}, s{st}, s{st+1}")
    A.e(f"s_mul_i32 s{st+1}, s{st}, 288")
    A.e(f"s_mul_i32 s{st+2}, s{S_J}, 7")
    A.e(f"s_add_u32 s{st+1}, s{st+1}, s{st+2}")
    A.e(f"s_lshl_b32 s{st+1}, s{st+1}, 10")
    A.e(f"s_add_u32 s{st+1}, s{st+1}, {WS_OH + 64*1024}")
    A.e(f"v_lshlrev_b32 v{VA}, 4, v{V_LANE}")
    A.e(f"v_add_u32 v{VA}, s{st+1}, v{VA}")
    A.e(f"v_add_u32 v{VA+1}, {288*1024}, v{VA}")
    if path == 0:
        A.e(f"s_lshl_b32 s{st+1}, s{S_J}, 6")
        A.e(f"s_add_u32 s{st+1}, s{st+1}, s{st}")
        A.e(f"s_lshl_b32 s{st+2}, s{st+1}, 11")
        A.e(f"s_add_u32 s{st+2}, s{st+2}, {WS_QF}")
        A.e(f"s_lshl_b32 s{st+3}, s{st+1}, 12")
        A.e(f"s_add_u32 s{st+3}, s{st+3}, {WS_KV}")
        A.e(f"v_lshlrev_b32 v{VA+2}, 4, v{V_LANE}")
        A.e(f"v_add_u32 v{VA+3}, s{st+3}, v{VA+2}")
        A.e(f"v_add_u32 v{VA+2}, s{st+2}, v{VA+2}")
        A.e(f"v_add_u32 v{VA+4}, 4096, v{VA+3}")
    A.e(f"s_mov_b32 s{S_C0}, {hex(f32bits(QSCALE))}")
    A.e(f"s_mov_b32 s{S_C0+1}, {hex(f32bits(-math.log2(math.e)))}")
    ws = f"s[{SRD_WS}:{SRD_WS+3}]"
    for bi, (kind, idx) in enumerate(blks):
        for mb in range(2):
            ac = acc(bi, mb)
            for r in range(16):
                A.e(f"v_accvgpr_read_b32 v{T+r}, a{ac+r}")
            if kind == "G":
                for r in range(8):
                    A.e(f"v_mul_f32 v{U+r}, s{S_C0+1}, v{T+r}")
                for r in range(8):
                    A.e(f"v_exp_f32 v{U+r}, v{U+r}")
                for r in range(8):
                    A.e(f"v_mul_f32 v{T+r}, v{T+r}, v{T+8+r}")
                for r in range(8):
                    A.e(f"v_add_f32 v{U+r}, 1.0, v{U+r}")
                for r in range(8):
                    A.e(f"v_rcp_f32 v{U+r}, v{U+r}")
                A.nop(1)
                for r in range(8):
                    A.e(f"v_mul_f32 v{T+r}, v{T+r}, v{U+r}")
                for r in range(4):
                    A.e(f"v_cvt_pk_bf16_f32 v{U+8+r}, v{T+2*r}, v{T+2*r+1}")
                A.e(f"s_mov_b32 s{S_C0+2}, {idx*1024}")
                A.e(f"buffer_store_dwordx4 {v(U+8,4)}, v{VA+mb}, {ws}, s{S_C0+2} offen")
                A.nop(2)
            else:
                if kind == "Q":
                    for r in range(16):
                        A.e(f"v_mul_f32 v{T+r}, s{S_C0}, v{T+r}")
                for r in range(8):
                    A.e(f"v_cvt_pk_bf16_f32 v{U+r}, v{T+2*r}, v{T+2*r+1}")
                if kind == "Q":
                    for t in range(2):
                        A.e(f"buffer_store_dwordx4 {v(U+4*t,4)}, v{VA+2}, {ws}, 0 offen offset:{mb*2048 + t*1024}")
                else:
                    o = 0 if kind == "K" else 2048
                    for t in range(2):
                        A.e(f"buffer_store_dwordx4 {v(U+4*t,4)}, v{VA+3+mb}, {ws}, 0 offen offset:{o + t*1024}")
                A.nop(2)


def emit_path(A, path):
    dl = dma_list(path)
    n = len(dl)
    blks = blocks_of(path)
    if path == 0:
        setup_bslot(A, 0, 0)
        setup_bslot(A, 1, 4)
        setup_bslot(A, 2, 8)
    else:
        setup_bslot(A, 0, 12)
        setup_bslot(A, 1, 16)
    A.nop(4)
    for st in range(3):
        for op in dl:
            emit_dma_m0(A, op, st)
            A.nop(1)
            emit_dma(A, op)
        emit_dma_advance(A, path)
    for r in range(160):
        A.e(f"v_accvgpr_write_b32 a{r}, 0")
    A.e(f"s_mov_b32 s{S_CNT}, 0")
    A.e(f"s_waitcnt vmcnt({2*n})")
    A.e("s_barrier")
    emit_xreads(A, 0, 0, 0)
    for bi, blk in enumerate(blks):
        emit_wreads(A, bi, blk, 0, 0)
    loop = A.newlabel("loop")
    A.label(loop)
    for r in range(4):
        emit_stage(A, path, r, True, n, False)
    A.e(f"s_add_u32 s{S_CNT}, s{S_CNT}, 1")
    A.e(f"s_cmp_lt_u32 s{S_CNT}, 7")
    A.e(f"s_cbranch_scc1 {loop}")
    emit_stage(A, path, 0, True, n, False)
    emit_stage(A, path, 1, False, n, False)
    emit_stage(A, path, 2, False, 0, False)
    emit_stage(A, path, 3, False, None, True)
    emit_epilogue(A, path)
    A.stamp_end(80, SRD_WS, V_E, 1)
    A.e("s_endpgm")


def gen_k1():
    A = Asm("k1")
    done = "L_k1_done"
    A.e("s_cmp_ge_u32 s2, 256")
    A.e(f"s_cbranch_scc1 {done}")
    A.stamp_begin(80)
    A.e(f"s_load_dwordx2 s[{S_WQKV}:{S_WQKV+1}], s[0:1], 8")
    A.e(f"s_load_dwordx2 s[{S_WG}:{S_WG+1}], s[0:1], 32")
    A.e(f"s_load_dwordx2 s[{S_WU}:{S_WU+1}], s[0:1], 40")
    A.e(f"s_load_dwordx2 s[{S_WS}:{S_WS+1}], s[0:1], 72")
    A.e(f"s_and_b32 s{S_J}, s2, 31")
    A.e(f"s_lshr_b32 s{S_I}, s2, 5")
    A.e(f"v_and_b32 v{V_LANE}, 63, v0")
    A.e(f"v_lshrrev_b32 v{V_T}, 6, v0")
    A.nop(1)
    A.e(f"v_readfirstlane_b32 s{S_W}, v{V_T}")
    A.nop(4)
    A.e(f"s_and_b32 s{S_WM}, s{S_W}, 3")
    t0, t1, t2 = V_T, V_T + 1, V_T + 2
    A.e(f"v_and_b32 v{t0}, 31, v{V_LANE}")
    A.e(f"s_lshl_b32 s{S_T}, s{S_WM}, 6")
    A.e(f"v_add_u32 v{t0}, s{S_T}, v{t0}")
    A.e(f"v_lshlrev_b32 v{t0}, 6, v{t0}")
    A.e(f"v_lshrrev_b32 v{t1}, 5, v{V_LANE}")
    A.e(f"v_bfe_u32 v{t2}, v{V_LANE}, 2, 2")
    A.e(f"v_xor_b32 v{t1}, v{t1}, v{t2}")
    A.e(f"v_lshl_add_u32 v{V_X[0]}, v{t1}, 4, v{t0}")
    A.e(f"v_xor_b32 v{t1}, 2, v{t1}")
    A.e(f"v_lshl_add_u32 v{V_X[1]}, v{t1}, 4, v{t0}")
    A.e(f"v_lshrrev_b32 v{t0}, 5, v{V_LANE}")
    A.e(f"v_lshlrev_b32 v{t0}, 3, v{t0}")
    A.e(f"v_bfe_u32 v{t1}, v{V_LANE}, 2, 2")
    A.e(f"v_add_u32 v{t0}, v{t0}, v{t1}")
    A.e(f"v_bfe_u32 v{t1}, v{V_LANE}, 4, 1")
    A.e(f"v_and_b32 v{t2}, 3, v{V_LANE}")
    A.e(f"v_lshlrev_b32 v{t2}, 3, v{t2}")
    A.e(f"v_mul_u32_u24 v{V_WQ}, 192, v{t0}")
    A.e(f"v_lshl_add_u32 v{V_WQ}, v{t1}, 5, v{V_WQ}")
    A.e(f"v_add_u32 v{V_WQ}, v{V_WQ}, v{t2}")
    A.e(f"v_add_u32 v{V_WQ}, {QKVA}, v{V_WQ}")
    A.e(f"v_mul_u32_u24 v{V_WG}, 224, v{t0}")
    A.e(f"v_mul_u32_u24 v{t1}, {GU_U}, v{t1}")
    A.e(f"v_add_u32 v{V_WG}, v{V_WG}, v{t1}")
    A.e(f"v_add_u32 v{V_WG}, v{V_WG}, v{t2}")
    A.e(f"v_add_u32 v{V_WG}, {GUA}, v{V_WG}")
    A.e(f"s_lshl_b32 s{S_T}, s{S_I}, 8")
    A.e(f"s_lshl_b32 s{S_T+1}, s{S_W}, 5")
    A.e(f"s_add_u32 s{S_T}, s{S_T}, s{S_T+1}")
    A.e(f"v_lshrrev_b32 v{t0}, 2, v{V_LANE}")
    A.e(f"v_add_u32 v{t0}, s{S_T}, v{t0}")
    A.e(f"v_lshlrev_b32 v{t0}, 11, v{t0}")
    A.e(f"v_and_b32 v{t1}, 3, v{V_LANE}")
    A.e(f"v_bfe_u32 v{t2}, v{V_LANE}, 4, 2")
    A.e(f"v_xor_b32 v{t1}, v{t1}, v{t2}")
    A.e(f"v_lshl_add_u32 v{V_OFFA[0]}, v{t1}, 4, v{t0}")
    A.e(f"v_add_u32 v{V_OFFA[1]}, {16*2048}, v{V_OFFA[0]}")
    assert WS_XN == 0
    A.e(f"s_lshl_b32 s{S_T}, s{S_W}, 11")
    for r in range(4):
        A.e(f"s_add_u32 s{S_M0A[0]+r}, s{S_T}, {XA + r*XA_SLOT}")
        A.e(f"s_add_u32 s{S_M0A[1]+r}, s{S_T}, {XA + r*XA_SLOT + 1024}")
    A.e(f"s_mov_b32 s{S_SOFFA}, 0")
    A.e("s_waitcnt lgkmcnt(0)")
    A.srd(SRD_WS, S_WS, WS_BYTES)
    p1 = "L_k1_path1"
    A.e(f"s_cmp_ge_u32 s{S_W}, 4")
    A.e(f"s_cbranch_scc1 {p1}")
    emit_path(A, 0)
    A.label(p1)
    emit_path(A, 1)
    A.label(done)
    A.e("s_endpgm")
    return A.text(), dict(vgpr=256, sgpr=96, accum=96, lds=LDS_BYTES)
```

```python
from asmlib import *
from layout import *

CHUNK = 32768
NSLOT = 4
LDS_BYTES = CHUNK * NSLOT
LMAX = 2.0 ** 100

S_WS = 4
SRD_WS = 8
S_J, S_QC, S_W = 12, 13, 14
S_SOFF = 15
S_M0 = 16
S_CNT = 17
S_T = 18
S_TH = 24
S_KVB = 25

V_LANE = 1
V_RD = 2
V_OFF = 3
V_T = 4
V_Q = 8
V_KF = 16
V_VF = 32
V_S = 56
V_P = 88
V_O = 104
V_NM = 120
V_LA = 136
V_SEL = 140
V_L = 144
V_DM = 145
V_RDH = 146
V_OUT = 147
V_M = 148
V_F = 149
NV = 176


def kf(b):
    return V_KF + 8 * b


def vf(b):
    return V_VF + 8 * b


def sreg(b):
    return V_S + 16 * b


def preg(b):
    return V_P + 8 * b


def lds_off(t):
    return ((t // 8) % NSLOT) * CHUNK + (t % 8) * 4096


def rd_addr(o):
    if o >= 65536:
        return V_RDH, o - 65536
    return V_RD, o


def emit_kread(A, t, buf):
    r, o = rd_addr(lds_off(t))
    A.e(f"ds_read_b128 {v(kf(buf),4)}, v{r} offset:{o}")
    A.e(f"ds_read_b128 {v(kf(buf)+4,4)}, v{r} offset:{o+1024}")


def emit_vread(A, t, buf):
    r, o = rd_addr(lds_off(t))
    A.e(f"ds_read_b128 {v(vf(buf),4)}, v{r} offset:{o+2048}")
    A.e(f"ds_read_b128 {v(vf(buf)+4,4)}, v{r} offset:{o+3072}")


def softmax_ops(sb, pb):
    S = sreg(sb)
    P = preg(pb)
    ops = []
    for g in range(4):
        for r in range(4):
            ops.append(f"v_exp_f32 v{S+4*g+r}, v{S+4*g+r}")
        if g > 0:
            q = g - 1
            ops.append(f"v_cvt_pk_bf16_f32 v{P+2*q}, v{S+4*q}, v{S+4*q+1}")
            ops.append(f"v_cvt_pk_bf16_f32 v{P+2*q+1}, v{S+4*q+2}, v{S+4*q+3}")
    return ops, [f"v_cvt_pk_bf16_f32 v{P+6}, v{S+12}, v{S+13}", f"v_cvt_pk_bf16_f32 v{P+7}, v{S+14}, v{S+15}"]


def emit_max16(A, S, dst, tmp):
    A.e(f"v_max3_f32 v{dst}, v{S}, v{S+1}, v{S+2}")
    for r in range(3, 15, 2):
        A.e(f"v_max3_f32 v{dst}, v{dst}, v{S+r}, v{S+r+1}")
    A.e(f"v_max_f32 v{dst}, v{dst}, v{S+15}")
    A.e(f"v_mov_b32 v{tmp}, v{dst}")
    A.nop(2)
    A.e(f"v_permlane32_swap_b32 v{dst}, v{tmp}")
    A.nop(2)
    A.e(f"v_max_f32 v{dst}, v{dst}, v{tmp}")


def emit_chunk_dma(A, slot):
    A.e(f"s_add_u32 m0, s{S_M0}, {slot*CHUNK}")
    A.nop(1)
    for u in range(4):
        A.e(f"buffer_load_dwordx4 v{V_OFF}, s[{SRD_WS}:{SRD_WS+3}], s{S_SOFF} offen offset:{u*1024} lds")
    A.e(f"s_add_u32 s{S_SOFF}, s{S_SOFF}, {CHUNK}")


def pv_mfmas(t):
    vb = t % 3
    pp = preg(t % 2)
    O = v(V_O, 16)
    LA = v(V_LA, 4)
    return [
        f"v_mfma_f32_32x32x16_bf16 {O}, {v(vf(vb),4)}, {v(pp,4)}, {O}",
        f"v_mfma_f32_16x16x32_bf16 {LA}, {v(V_SEL,4)}, {v(pp,4)}, {LA}",
        f"v_mfma_f32_32x32x16_bf16 {O}, {v(vf(vb)+4,4)}, {v(pp+4,4)}, {O}",
        f"v_mfma_f32_16x16x32_bf16 {LA}, {v(V_SEL,4)}, {v(pp+4,4)}, {LA}",
    ]


def emit_tile(A, t, barrier_vm, issue_slot):
    first = t == 0
    last = t == 63
    sb = t % 2
    ops, tail = softmax_ops(sb, sb)
    ops = ops + tail
    mf = []
    if not last:
        kb = (t + 1) % 2
        Sn = v(sreg(sb ^ 1), 16)
        mf.append(f"v_mfma_f32_32x32x16_bf16 {Sn}, {v(kf(kb),4)}, {v(V_Q,4)}, {v(V_NM,16)}")
        mf.append(f"v_mfma_f32_32x32x16_bf16 {Sn}, {v(kf(kb)+4,4)}, {v(V_Q+4,4)}, {Sn}")
    if not first:
        mf += pv_mfmas(t - 1)
    A.c(f"tile {t}")
    A.e("s_waitcnt lgkmcnt(0)")
    if barrier_vm is not None:
        A.e(f"s_waitcnt vmcnt({barrier_vm})")
        A.e("s_barrier")
    pos = [0, 4, 8, 12, 14, 18]
    k = 0
    for i, op in enumerate(ops):
        while k < len(mf) and i == pos[k]:
            A.e(mf[k])
            k += 1
        A.e(op)
        if i == 5:
            if t + 2 < 64:
                emit_kread(A, t + 2, t % 2)
            if t + 1 < 64:
                emit_vread(A, t + 1, (t + 1) % 3)
        if i == 10 and issue_slot is not None:
            emit_chunk_dma(A, issue_slot)
    assert k == len(mf), (k, len(mf))


def emit_fallback(A, label, back):
    ws = f"s[{SRD_WS}:{SRD_WS+3}]"
    S = sreg(0)
    P = preg(0)
    A.label(label)
    A.nop(16)
    for r in range(16):
        A.e(f"v_mov_b32 v{V_O+r}, 0")
    A.e(f"v_mov_b32 v{V_L}, 0")
    A.e(f"v_mov_b32 v{V_M}, 0xff7fffff")
    A.e(f"v_add_u32 v{V_T+3}, s{S_KVB}, v{V_RD}")
    A.e(f"s_mov_b32 s{S_CNT}, 0")
    loop = A.newlabel("fb")
    A.label(loop)
    A.e(f"buffer_load_dwordx4 {v(kf(0),4)}, v{V_T+3}, {ws}, s{S_CNT} offen")
    A.e(f"buffer_load_dwordx4 {v(kf(0)+4,4)}, v{V_T+3}, {ws}, s{S_CNT} offen offset:1024")
    A.e(f"buffer_load_dwordx4 {v(vf(0),4)}, v{V_T+3}, {ws}, s{S_CNT} offen offset:2048")
    A.e(f"buffer_load_dwordx4 {v(vf(0)+4,4)}, v{V_T+3}, {ws}, s{S_CNT} offen offset:3072")
    A.e("s_waitcnt vmcnt(0)")
    Sv = v(S, 16)
    A.e(f"v_mfma_f32_32x32x16_bf16 {Sv}, {v(kf(0),4)}, {v(V_Q,4)}, 0")
    A.e(f"v_mfma_f32_32x32x16_bf16 {Sv}, {v(kf(0)+4,4)}, {v(V_Q+4,4)}, {Sv}")
    A.nop(16)
    emit_max16(A, S, V_DM, V_T)
    A.e(f"v_max_f32 v{V_DM}, v{V_DM}, v{V_M}")
    A.e(f"v_sub_f32 v{V_F}, v{V_M}, v{V_DM}")
    A.e(f"v_exp_f32 v{V_F}, v{V_F}")
    A.e(f"v_mov_b32 v{V_M}, v{V_DM}")
    for r in range(16):
        A.e(f"v_sub_f32 v{S+r}, v{S+r}, v{V_DM}")
    for r in range(16):
        A.e(f"v_exp_f32 v{S+r}, v{S+r}")
    for r in range(16):
        A.e(f"v_mul_f32 v{V_O+r}, v{V_O+r}, v{V_F}")
    A.e(f"v_mul_f32 v{V_L}, v{V_L}, v{V_F}")
    for r in range(16):
        A.e(f"v_add_f32 v{V_L}, v{V_L}, v{S+r}")
    for q in range(8):
        A.e(f"v_cvt_pk_bf16_f32 v{P+q}, v{S+2*q}, v{S+2*q+1}")
    A.nop(2)
    O = v(V_O, 16)
    A.e(f"v_mfma_f32_32x32x16_bf16 {O}, {v(vf(0),4)}, {v(P,4)}, {O}")
    A.e(f"v_mfma_f32_32x32x16_bf16 {O}, {v(vf(0)+4,4)}, {v(P+4,4)}, {O}")
    A.nop(16)
    A.e(f"s_add_u32 s{S_CNT}, s{S_CNT}, 4096")
    A.e(f"s_cmp_lt_u32 s{S_CNT}, {64*4096}")
    A.e(f"s_cbranch_scc1 {loop}")
    A.e(f"v_mov_b32 v{V_T}, v{V_L}")
    A.nop(2)
    A.e(f"v_permlane32_swap_b32 v{V_L}, v{V_T}")
    A.nop(2)
    A.e(f"v_add_f32 v{V_L}, v{V_L}, v{V_T}")
    A.e(f"s_branch {back}")


def gen_k2(prefetch=None):
    A = Asm("k2")
    done = "L_k2_done"
    A.e("s_cmp_ge_u32 s2, 256")
    A.e(f"s_cbranch_scc1 {done}")
    A.stamp_begin(32)
    A.e(f"s_load_dwordx2 s[{S_WS}:{S_WS+1}], s[0:1], 72")
    if prefetch:
        prefetch.loads(A)
    A.e(f"s_and_b32 s{S_J}, s2, 31")
    A.e(f"s_lshr_b32 s{S_QC}, s2, 5")
    A.e(f"v_and_b32 v{V_LANE}, 63, v0")
    A.e(f"v_lshrrev_b32 v{V_T}, 6, v0")
    A.nop(1)
    A.e(f"v_readfirstlane_b32 s{S_W}, v{V_T}")
    A.nop(4)
    A.e(f"v_lshlrev_b32 v{V_RD}, 4, v{V_LANE}")
    A.e(f"v_add_u32 v{V_RDH}, 0x10000, v{V_RD}")
    A.e(f"s_lshl_b32 s{S_KVB}, s{S_J}, 18")
    A.e(f"s_add_u32 s{S_KVB}, s{S_KVB}, {WS_KV}")
    A.e(f"s_lshl_b32 s{S_M0}, s{S_W}, 12")
    A.e(f"s_add_u32 s{S_T}, s{S_KVB}, s{S_M0}")
    A.e(f"v_add_u32 v{V_OFF}, s{S_T}, v{V_RD}")
    A.e(f"s_mov_b32 s{S_SOFF}, 0")
    A.e(f"s_mov_b32 s{S_TH}, {hex(f32bits(LMAX))}")
    A.e(f"s_lshl_b32 s{S_T}, s{S_J}, 6")
    A.e(f"s_lshl_b32 s{S_T+1}, s{S_QC}, 3")
    A.e(f"s_add_u32 s{S_T+1}, s{S_T+1}, s{S_W}")
    A.e(f"s_add_u32 s{S_T}, s{S_T}, s{S_T+1}")
    A.e(f"s_lshl_b32 s{S_T}, s{S_T}, 11")
    A.e(f"s_add_u32 s{S_T}, s{S_T}, {WS_QF}")
    A.e(f"v_add_u32 v{V_T}, s{S_T}, v{V_RD}")
    A.e(f"s_mul_i32 s{S_T+1}, s{S_T+1}, 288")
    A.e(f"s_lshl_b32 s{S_T+2}, s{S_J}, 1")
    A.e(f"s_add_u32 s{S_T+1}, s{S_T+1}, s{S_T+2}")
    A.e(f"s_lshl_b32 s{S_T+1}, s{S_T+1}, 10")
    A.e(f"s_add_u32 s{S_T+1}, s{S_T+1}, {WS_OH}")
    A.e(f"v_add_u32 v{V_OUT}, s{S_T+1}, v{V_RD}")
    A.e("s_waitcnt lgkmcnt(0)")
    A.srd(SRD_WS, S_WS, WS_BYTES)
    ws = f"s[{SRD_WS}:{SRD_WS+3}]"
    A.e(f"buffer_load_dwordx4 {v(V_Q,4)}, v{V_T}, {ws}, 0 offen")
    A.e(f"buffer_load_dwordx4 {v(V_Q+4,4)}, v{V_T}, {ws}, 0 offen offset:1024")
    for c in range(3):
        emit_chunk_dma(A, c)
    npf = prefetch.issue(A) if prefetch else 0
    for r in range(16):
        A.e(f"v_mov_b32 v{V_O+r}, 0")
    for r in range(4):
        A.e(f"v_mov_b32 v{V_LA+r}, 0")
    A.e(f"v_and_b32 v{V_T+1}, 31, v{V_LANE}")
    A.e(f"v_cmp_eq_u32 vcc, 0, v{V_T+1}")
    A.e(f"v_cmp_eq_u32 s[{S_T+2}:{S_T+3}], 17, v{V_T+1}")
    A.nop(2)
    A.e(f"s_or_b64 vcc, vcc, s[{S_T+2}:{S_T+3}]")
    A.e(f"v_mov_b32 v{V_T+1}, 0x3f803f80")
    A.nop(2)
    for r in range(4):
        A.e(f"v_cndmask_b32 v{V_SEL+r}, 0, v{V_T+1}, vcc")
    A.e(f"s_waitcnt vmcnt({8+npf})")
    A.e("s_barrier")
    emit_kread(A, 0, 0)
    emit_kread(A, 1, 1)
    emit_vread(A, 0, 0)
    A.e("s_waitcnt lgkmcnt(0)")
    S0 = v(sreg(0), 16)
    A.e(f"v_mfma_f32_32x32x16_bf16 {S0}, {v(kf(0),4)}, {v(V_Q,4)}, 0")
    A.e(f"v_mfma_f32_32x32x16_bf16 {S0}, {v(kf(0)+4,4)}, {v(V_Q+4,4)}, {S0}")
    A.nop(16)
    emit_max16(A, sreg(0), V_DM, V_T)
    for r in range(16):
        A.e(f"v_sub_f32 v{V_NM+r}, 0, v{V_DM}")
    for r in range(16):
        A.e(f"v_sub_f32 v{sreg(0)+r}, v{sreg(0)+r}, v{V_DM}")
    A.stamp_mid(32, 0)
    for t in range(64):
        bvm = None
        isl = None
        if (t + 2) % 8 == 0 and t + 2 < 64:
            c = (t + 2) // 8
            issued = min(c + 1, 7)
            bvm = 4 * (issued - c)
            if c == 1:
                bvm += npf
            if c + 2 < 8:
                isl = (c + 2) % NSLOT
        emit_tile(A, t, bvm, isl)
    A.stamp_mid(32, 1)
    A.e("s_waitcnt lgkmcnt(0)")
    A.nop(2)
    for m in pv_mfmas(63):
        A.e(m)
    A.e(f"v_and_b32 v{V_T}, 15, v{V_LANE}")
    A.e(f"v_lshlrev_b32 v{V_T}, 2, v{V_T}")
    A.e(f"v_and_b32 v{V_T+1}, 16, v{V_LANE}")
    A.e(f"v_cmp_ne_u32 vcc, 0, v{V_T+1}")
    A.nop(16)
    A.e(f"ds_bpermute_b32 v{V_T+1}, v{V_T}, v{V_LA}")
    A.e(f"ds_bpermute_b32 v{V_T+2}, v{V_T}, v{V_LA+1}")
    A.e("s_waitcnt lgkmcnt(0)")
    A.e(f"v_cndmask_b32 v{V_L}, v{V_T+1}, v{V_T+2}, vcc")
    A.e(f"v_mul_f32 v{V_T}, 0, v{V_O}")
    for r in range(1, 16):
        A.e(f"v_fmac_f32 v{V_T}, 0, v{V_O+r}")
    A.e(f"v_add_f32 v{V_T}, v{V_T}, v{V_L}")
    A.e(f"v_cmp_nlt_f32 vcc, v{V_T}, s{S_TH}") if False else A.e(f"v_cmp_ngt_f32 vcc, s{S_TH}, v{V_T}")
    fb = A.newlabel("fallback")
    back = A.newlabel("back")
    A.e(f"s_cbranch_vccnz {fb}")
    A.label(back)
    A.e(f"v_rcp_f32 v{V_L}, v{V_L}")
    A.nop(1)
    for r in range(16):
        A.e(f"v_mul_f32 v{V_O+r}, v{V_O+r}, v{V_L}")
    for r in range(8):
        A.e(f"v_cvt_pk_bf16_f32 v{V_P+r}, v{V_O+2*r}, v{V_O+2*r+1}")
    A.e(f"buffer_store_dwordx4 {v(V_P,4)}, v{V_OUT}, {ws}, 0 offen")
    A.e(f"buffer_store_dwordx4 {v(V_P+4,4)}, v{V_OUT}, {ws}, 0 offen offset:1024")
    A.stamp_end(32, SRD_WS, V_S, 2)
    A.label(done)
    A.e("s_endpgm")
    emit_fallback(A, fb, back)
    return A.text(), dict(vgpr=NV, sgpr=64, accum=NV, lds=LDS_BYTES)
```

```python
from asmlib import *
from layout import *

import os
EXP = os.environ.get("K3EXP", "").split(",")
NW = 4
NSTEP = 36
RING = 6
B_SLOT = 4096
B_WAVE = RING * B_SLOT
LDS_BYTES = 131072

S_X, S_WO, S_WD, S_OUT, S_WS = 4, 6, 8, 10, 12
SRD_WS, SRD_B, SRD_X, SRD_OUT = 16, 20, 24, 28
S_I, S_JN, S_W = 32, 33, 34
S_SOFFA, S_SOFFB, S_STG = 37, 38, 39
S_M0B = 41
S_CNT = 42
S_WDHI = 43
S_T = 44

V_LANE = 1
V_WA = [2, 3]
V_OFFA = [4, 5, 6, 7]
V_OFFB = [8, 9, 10, 11]
V_T = 12
V_AF = 16
V_BF = 208
NV = 240
V_XR = 16
V_R = 48


def af(st, s_, mb):
    return V_AF + ((st * 2 + s_) * 4 + mb) * 4


def bf(buf, s_, nb):
    return V_BF + ((buf * 2 + s_) * 2 + nb) * 4


def acc(nb, mb):
    return (nb * 4 + mb) * 16


def load_ops(ring):
    ws = f"s[{SRD_WS}:{SRD_WS+3}]"
    ops = []
    pre = [
        f"s_cmp_eq_u32 s{S_STG}, 32",
        f"s_cselect_b32 s{SRD_B}, s{S_WD}, s{SRD_B}",
        f"s_cselect_b32 s{SRD_B+1}, s{S_WDHI}, s{SRD_B+1}",
        f"s_cselect_b32 s{SRD_B+2}, {3584*1024*2}, s{SRD_B+2}",
        f"s_cselect_b32 s{S_SOFFB}, 0, s{S_SOFFB}",
    ]
    for u in range(4):
        g = []
        if u == 0:
            g += pre
        g.append(f"s_add_u32 m0, s{S_M0B}, {ring*B_SLOT + u*1024}")
        g.append("s_nop 0")
        g.append(f"buffer_load_dwordx4 v{V_OFFB[u]}, s[{SRD_B}:{SRD_B+3}], s{S_SOFFB} offen lds")
        ops.append(g)
    for s_ in range(2):
        for mb in range(4):
            g = [f"buffer_load_dwordx4 {v(af(ring, s_, mb),4)}, v{V_OFFA[mb]}, {ws}, s{S_SOFFA} offen offset:{s_*1024}"]
            if s_ == 1 and mb == 3:
                g.append(f"s_add_u32 s{S_SOFFA}, s{S_SOFFA}, 2048")
                g.append(f"s_add_u32 s{S_SOFFB}, s{S_SOFFB}, {32*2048}")
                g.append(f"s_add_u32 s{S_STG}, s{S_STG}, 1")
            ops.append(g)
    return ops


def emit_breads(A, ring, buf):
    for s_ in range(2):
        for nb in range(2):
            for rd in range(2):
                o = ring * B_SLOT + (16 * s_ + 8 * rd) * 128
                A.e(f"ds_read_b64_tr_b16 {v(bf(buf, s_, nb)+2*rd,2)}, v{V_WA[nb]} offset:{o}")


def emit_step(A, ring, par, issue, vmw, has_next=True):
    A.e("s_waitcnt lgkmcnt(0)")
    if has_next:
        A.e(f"s_waitcnt vmcnt({vmw})")
        emit_breads(A, (ring + 1) % RING, par ^ 1)
    ops = load_ops((ring + 5) % RING) if issue else []
    k = 0
    for s_ in range(2):
        for nb in range(2):
            for mb in range(4):
                D = a(acc(nb, mb), 16)
                if "nomfma" not in EXP:
                    A.e(f"v_mfma_f32_32x32x16_bf16 {D}, {v(bf(par, s_, nb),4)}, {v(af(ring, s_, mb),4)}, {D}")
                if k < len(ops):
                    for l in ops[k]:
                        A.e(l)
                    k += 1
    assert k == len(ops)


def gen_k3():
    A = Asm("k3")
    done = "L_k3_done"
    A.e("s_cmp_ge_u32 s2, 256")
    A.e(f"s_cbranch_scc1 {done}")
    A.stamp_begin(52)
    A.e(f"s_load_dwordx2 s[{S_X}:{S_X+1}], s[0:1], 0")
    A.e(f"s_load_dwordx2 s[{S_WO}:{S_WO+1}], s[0:1], 16")
    A.e(f"s_load_dwordx2 s[{S_WD}:{S_WD+1}], s[0:1], 48")
    A.e(f"s_load_dwordx2 s[{S_OUT}:{S_OUT+1}], s[0:1], 56")
    A.e(f"s_load_dwordx2 s[{S_WS}:{S_WS+1}], s[0:1], 72")
    t = S_T
    A.e(f"s_and_b32 s{t}, s2, 7")
    A.e(f"s_lshr_b32 s{t+1}, s2, 3")
    A.e(f"s_lshr_b32 s{t+2}, s{t}, 1")
    A.e(f"s_lshl_b32 s{t+2}, s{t+2}, 2")
    A.e(f"s_and_b32 s{t+3}, s{t+1}, 3")
    A.e(f"s_add_u32 s{S_I}, s{t+2}, s{t+3}")
    A.e(f"s_and_b32 s{t+2}, s{t}, 1")
    A.e(f"s_lshl_b32 s{t+2}, s{t+2}, 3")
    A.e(f"s_lshr_b32 s{t+3}, s{t+1}, 2")
    A.e(f"s_add_u32 s{S_JN}, s{t+2}, s{t+3}")
    if "same" in EXP:
        A.e(f"s_mov_b32 s{S_I}, 0")
        A.e(f"s_mov_b32 s{S_JN}, 0")
    if "sameA" in EXP:
        A.e(f"s_mov_b32 s{S_I}, 0")
    if "sameB" in EXP:
        A.e(f"s_mov_b32 s{S_JN}, 0")
    A.e(f"v_and_b32 v{V_LANE}, 63, v0")
    A.e(f"v_lshrrev_b32 v{V_T}, 6, v0")
    A.nop(1)
    A.e(f"v_readfirstlane_b32 s{S_W}, v{V_T}")
    A.nop(4)
    t0, t1, t2, t3 = V_T, V_T + 1, V_T + 2, V_T + 3
    A.e(f"s_mul_i32 s{S_M0B}, s{S_W}, {B_WAVE}")
    A.e(f"v_lshrrev_b32 v{t0}, 5, v{V_LANE}")
    A.e(f"v_lshlrev_b32 v{t0}, 2, v{t0}")
    A.e(f"v_bfe_u32 v{t1}, v{V_LANE}, 2, 2")
    A.e(f"v_add_u32 v{t0}, v{t0}, v{t1}")
    A.e(f"v_lshlrev_b32 v{t0}, 7, v{t0}")
    A.e(f"v_bfe_u32 v{t2}, v{V_LANE}, 4, 1")
    A.e(f"v_lshl_add_u32 v{t0}, v{t2}, 5, v{t0}")
    A.e(f"v_and_b32 v{t2}, 3, v{V_LANE}")
    A.e(f"v_lshl_add_u32 v{t0}, v{t2}, 3, v{t0}")
    A.e(f"v_add_u32 v{t0}, s{S_M0B}, v{t0}")
    A.e(f"v_lshrrev_b32 v{t1}, 1, v{t1}")
    A.e(f"v_lshl_add_u32 v{V_WA[0]}, v{t1}, 6, v{t0}")
    A.e(f"v_xor_b32 v{t1}, 1, v{t1}")
    A.e(f"v_lshl_add_u32 v{V_WA[1]}, v{t1}, 6, v{t0}")
    A.e(f"s_mul_i32 s{t}, s{S_I}, {4*288*1024}")
    A.e(f"s_mul_i32 s{t+1}, s{S_W}, {72*1024}")
    A.e(f"s_add_u32 s{t}, s{t}, s{t+1}")
    A.e(f"s_add_u32 s{t}, s{t}, {WS_OH}")
    A.e(f"v_lshlrev_b32 v{t0}, 4, v{V_LANE}")
    A.e(f"v_add_u32 v{V_OFFA[0]}, s{t}, v{t0}")
    for mb in range(1, 4):
        A.e(f"v_add_u32 v{V_OFFA[mb]}, {288*1024}, v{V_OFFA[mb-1]}")
    A.e(f"v_lshrrev_b32 v{t0}, 3, v{V_LANE}")
    A.e(f"v_lshlrev_b32 v{t0}, 11, v{t0}")
    A.e(f"v_bfe_u32 v{t1}, v{V_LANE}, 2, 1")
    A.e(f"v_bfe_u32 v{t2}, v{V_LANE}, 4, 1")
    A.e(f"v_xor_b32 v{t1}, v{t1}, v{t2}")
    A.e(f"v_lshl_add_u32 v{t0}, v{t1}, 6, v{t0}")
    A.e(f"v_and_b32 v{t1}, 3, v{V_LANE}")
    A.e(f"v_lshl_add_u32 v{t0}, v{t1}, 4, v{t0}")
    A.e(f"s_lshl_b32 s{t+2}, s{S_JN}, 7")
    A.e(f"v_add_u32 v{V_OFFB[0]}, s{t+2}, v{t0}")
    for u in range(1, 4):
        A.e(f"v_add_u32 v{V_OFFB[u]}, {8*2048}, v{V_OFFB[u-1]}")
    A.e(f"s_mov_b32 s{S_SOFFA}, 0")
    A.e(f"s_mul_i32 s{S_STG}, s{S_W}, {NSTEP}")
    A.e(f"s_mov_b32 s{S_CNT}, 0")
    A.e("s_waitcnt lgkmcnt(0)")
    A.srd(SRD_WS, S_WS, WS_BYTES)
    A.srd(SRD_B, S_WO, 1024 * 1024 * 2)
    A.srd(SRD_X, S_X, 2048 * 1024 * 2)
    A.srd(SRD_OUT, S_OUT, 2048 * 1024 * 2)
    A.e(f"s_and_b32 s{S_WDHI}, s{S_WD+1}, 0xffff")
    A.e(f"s_mov_b32 s{S_SOFFB}, 0")
    A.e(f"s_sub_u32 s{t}, s{S_STG}, 32")
    A.e(f"s_lshl_b32 s{t}, s{t}, 16")
    A.e(f"s_cmp_gt_u32 s{S_STG}, 32")
    A.e(f"s_cselect_b32 s{SRD_B}, s{S_WD}, s{SRD_B}")
    A.e(f"s_cselect_b32 s{SRD_B+1}, s{S_WDHI}, s{SRD_B+1}")
    A.e(f"s_cselect_b32 s{SRD_B+2}, {3584*1024*2}, s{SRD_B+2}")
    A.e(f"s_cselect_b32 s{S_SOFFB}, s{t}, s{S_SOFFB}")
    for st in range(5):
        for g in load_ops(st):
            for l in g:
                A.e(l)
    for r in range(128):
        A.e(f"v_accvgpr_write_b32 a{r}, 0")
    A.e("s_waitcnt vmcnt(48)")
    emit_breads(A, 0, 0)
    loop = A.newlabel("loop")
    A.label(loop)
    for r in range(RING):
        emit_step(A, r, r % 2, True, 36)
    A.e(f"s_add_u32 s{S_CNT}, s{S_CNT}, 1")
    A.e(f"s_cmp_lt_u32 s{S_CNT}, 5")
    A.e(f"s_cbranch_scc1 {loop}")
    emit_step(A, 0, 0, True, 36)
    emit_step(A, 1, 1, False, 36)
    emit_step(A, 2, 0, False, 24)
    emit_step(A, 3, 1, False, 12)
    emit_step(A, 4, 0, False, 0)
    emit_step(A, 5, 1, False, None, has_next=False)
    A.e(f"s_lshr_b32 s{t}, s{S_W}, 1")
    A.e(f"s_and_b32 s{t+1}, s{S_W}, 1")
    A.e(f"s_lshl_b32 s{t+2}, s{S_I}, 7")
    A.e(f"s_lshl_b32 s{t+3}, s{t+1}, 6")
    A.e(f"s_add_u32 s{t+2}, s{t+2}, s{t+3}")
    A.e(f"v_and_b32 v{t0}, 31, v{V_LANE}")
    A.e(f"v_add_u32 v{t0}, s{t+2}, v{t0}")
    A.e(f"v_lshlrev_b32 v{t0}, 11, v{t0}")
    A.e(f"v_lshrrev_b32 v{t1}, 5, v{V_LANE}")
    A.e(f"v_lshl_add_u32 v{t0}, v{t1}, 3, v{t0}")
    A.e(f"s_lshl_b32 s{t+2}, s{S_JN}, 7")
    A.e(f"s_lshl_b32 s{t+3}, s{t}, 6")
    A.e(f"s_add_u32 s{t+2}, s{t+2}, s{t+3}")
    A.e(f"v_add_u32 v{t0}, s{t+2}, v{t0}")
    A.e(f"v_add_u32 v{t1}, {32*2048}, v{t0}")
    for e in range(2):
        for g in range(4):
            A.e(f"buffer_load_dwordx2 {v(V_XR+(e*4+g)*2,2)}, v{t0+e}, s[{SRD_X}:{SRD_X+3}], 0 offen offset:{g*16}")
    A.e(f"v_lshlrev_b32 v{t3}, 4, v{V_LANE}")
    A.e(f"s_lshl_b32 s{t+2}, s{S_W}, 15")
    A.e(f"v_add_u32 v{t2}, s{t+2}, v{t3}")
    A.e(f"s_lshl_b32 s{t+2}, s{S_W}, 13")
    A.e(f"v_add_u32 v{t3}, s{t+2}, v{t3}")
    A.e(f"v_add_u32 v{V_WA[0]}, 0x10000, v{t3}")
    A.e("s_barrier")
    A.nop(16)
    for b in range(8):
        for g in range(4):
            A.e(f"ds_write_b128 v{t2}, {a(b*16+g*4,4)} offset:{(b*4+g)*1024}")
    A.e("s_waitcnt lgkmcnt(0)")
    A.e("s_barrier")
    for src in range(4):
        for e in range(2):
            for g in range(4):
                o = src * 32768 + e * 4096 + g * 1024
                r = t3
                if o >= 65536:
                    o -= 65536
                    r = V_WA[0]
                A.e(f"ds_read_b128 {v(V_R+(src*2+e)*16+g*4,4)}, v{r} offset:{o}")
    A.e(f"s_mov_b32 s{t}, 0xffff0000")
    A.e("s_waitcnt lgkmcnt(0)")
    for r in range(32):
        A.e(f"v_add_f32 v{V_R+r}, v{V_R+r}, v{V_R+32+r}")
        A.e(f"v_add_f32 v{V_R+64+r}, v{V_R+64+r}, v{V_R+96+r}")
    A.e("s_waitcnt vmcnt(0)")
    for r in range(32):
        A.e(f"v_add_f32 v{V_R+r}, v{V_R+r}, v{V_R+64+r}")
    for q in range(16):
        A.e(f"v_lshlrev_b32 v{V_R+32+2*q}, 16, v{V_XR+q}")
        A.e(f"v_and_b32 v{V_R+33+2*q}, s{t}, v{V_XR+q}")
    for r in range(32):
        A.e(f"v_add_f32 v{V_R+r}, v{V_R+r}, v{V_R+32+r}")
    for q in range(16):
        A.e(f"v_cvt_pk_bf16_f32 v{V_XR+q}, v{V_R+2*q}, v{V_R+2*q+1}")
    for e in range(2):
        for g in range(4):
            A.e(f"buffer_store_dwordx2 {v(V_XR+(e*4+g)*2,2)}, v{t0+e}, s[{SRD_OUT}:{SRD_OUT+3}], 0 offen offset:{g*16}")
    A.stamp_end(52, SRD_WS, V_R, 3)
    A.label(done)
    A.e("s_endpgm")
    return A.text(), dict(vgpr=NV + 128, sgpr=64, accum=NV, lds=LDS_BYTES, block=256)
```

```python
import sys, os
sys.path.insert(0, os.path.dirname(os.path.abspath(__file__)))
from asmlib import *
from k0_ln import gen_k0
from k1_gemm1 import gen_k1
from k2_attn import gen_k2
from k3_gemm2 import gen_k3

HEADER = open("parallel_sum__mha_block__swiglu_ffn__prompt.s.ref").read().split("; Override launch")[0]

class PF2:
    def loads(self, A):
        A.e("s_load_dwordx2 s[40:41], s[0:1], 16")
        A.e("s_load_dwordx2 s[42:43], s[0:1], 48")
    def issue(self, A):
        A.srd(44, 40, 1024 * 1024 * 2)
        A.srd(48, 42, 3584 * 1024 * 2)
        A.e("s_lshl_b32 s40, s2, 3")
        A.e("s_add_u32 s40, s40, s14")
        A.e("s_lshl_b32 s41, s40, 10")
        A.e("s_lshl_b32 s42, s40, 12")
        A.e("buffer_load_dwordx4 v[152:155], v2, s[44:47], s41 offen")
        for u in range(4):
            A.e(f"buffer_load_dwordx4 v[{156+4*u}:{159+4*u}], v2, s[48:51], s42 offen offset:{u*1024}")
        return 5

PFON = os.environ.get("PF", "1") == "1"

def build(out):
    ks = [("ln_kernel", gen_k0(PFON), 512, 256),
          ("gemm1_kernel", gen_k1(), 256, 512),
          ("attn_kernel", gen_k2(PF2() if PFON else None), 256, 512),
          ("gemm2_kernel", gen_k3(), 256, 256)]
    txt = HEADER
    for name, (body, m), grid, blk in ks:
        txt += f"; @launch kernel={name} grid=({grid},1,1) block=({blk},1,1) lds={m.get('lds',0)}\n"
    txt += '.amdgcn_target "amdgcn-amd-amdhsa--gfx950"\n.text\n'
    for name, (body, m), grid, blk in ks:
        txt += kernel_wrap(name, body, m['vgpr'], m['sgpr'], m['accum'])
    txt += '.section .rodata,"a"\n'
    for name, (body, m), grid, blk in ks:
        txt += kernel_desc(name, m['vgpr'], m['sgpr'], m['accum'])
    open(out, "w").write(txt)

if __name__ == "__main__":
    out = sys.argv[1] if len(sys.argv) > 1 else "parallel_sum__mha_block__swiglu_ffn__prompt.s"
    if len(sys.argv) > 2 and sys.argv[2] == "stamp":
        STAMP[0] = True
    build(out)
    print("wrote", out, os.path.getsize(out))
```

```python
import struct
STAMP = [False]


def f32bits(x):
    return struct.unpack("<I", struct.pack("<f", x))[0]


def v(i, n=1):
    return f"v{i}" if n == 1 else f"v[{i}:{i+n-1}]"


def a(i, n=1):
    return f"a{i}" if n == 1 else f"a[{i}:{i+n-1}]"


def s(i, n=1):
    return f"s{i}" if n == 1 else f"s[{i}:{i+n-1}]"


class Asm:
    def __init__(self, name):
        self.name = name
        self.lines = []
        self.nlabel = 0

    def e(self, txt):
        self.lines.append("    " + txt)

    def c(self, txt):
        self.lines.append("    ; " + txt)

    def label(self, l):
        self.lines.append(l + ":")

    def newlabel(self, base):
        self.nlabel += 1
        return f"L_{self.name}_{base}_{self.nlabel}"

    def text(self):
        return "\n".join(self.lines)

    def srd(self, d, base, nbytes):
        self.e(f"s_mov_b32 s{d}, s{base}")
        self.e(f"s_and_b32 s{d+1}, s{base+1}, 0xffff")
        self.e(f"s_mov_b32 s{d+2}, {nbytes}")
        self.e(f"s_mov_b32 s{d+3}, 0x00020000")

    def stamp_begin(self, sb):
        if not STAMP[0]:
            return
        self.e(f"s_memtime s[{sb}:{sb+1}]")
        self.e(f"s_memrealtime s[{sb+2}:{sb+3}]")
        self.e("s_waitcnt lgkmcnt(0)")

    def stamp_mid(self, sb, k):
        if not STAMP[0]:
            return
        self.e(f"s_memtime s[{sb+8+2*k}:{sb+9+2*k}]")
        self.e("s_waitcnt lgkmcnt(0)")

    def stamp_end(self, sb, srd, vt, slot, wshift=3):
        if not STAMP[0]:
            return
        self.e("s_waitcnt vmcnt(0) lgkmcnt(0)")
        self.e(f"s_memtime s[{sb+4}:{sb+5}]")
        self.e(f"s_memrealtime s[{sb+6}:{sb+7}]")
        self.e("s_waitcnt lgkmcnt(0)")
        self.e(f"v_mov_b32 v{vt}, s{sb}")
        self.e(f"v_mov_b32 v{vt+1}, s{sb+2}")
        self.e(f"v_mov_b32 v{vt+2}, s{sb+4}")
        self.e(f"v_mov_b32 v{vt+3}, s{sb+6}")
        self.e(f"v_lshrrev_b32 v{vt+4}, 6, v0")
        self.e(f"s_lshl_b32 s{sb}, s2, {wshift}")
        self.e(f"v_add_u32 v{vt+4}, s{sb}, v{vt+4}")
        self.e(f"v_lshlrev_b32 v{vt+4}, 4, v{vt+4}")
        self.e(f"v_add_u32 v{vt+4}, {200*(1<<20) + slot*65536}, v{vt+4}")
        self.e(f"buffer_store_dwordx4 v[{vt}:{vt+3}], v{vt+4}, s[{srd}:{srd+3}], 0 offen")
        self.nop(4)
        self.e(f"v_mov_b32 v{vt}, s{sb+8}")
        self.e(f"v_mov_b32 v{vt+1}, s{sb+10}")
        self.e(f"v_add_u32 v{vt+4}, {32768}, v{vt+4}")
        self.e(f"buffer_store_dwordx2 v[{vt}:{vt+1}], v{vt+4}, s[{srd}:{srd+3}], 0 offen")

    def nop(self, n):
        while n > 0:
            k = min(n, 16)
            self.e(f"s_nop {k-1}")
            n -= k


def kernel_wrap(name, body, vgpr, sgpr, accum):
    return f""".globl {name}
.p2align 8
.type {name},@function
{name}:
{body}
"""


def kernel_desc(name, vgpr, sgpr, accum):
    return f""".p2align 6
.amdhsa_kernel {name}
  .amdhsa_next_free_vgpr {vgpr}
  .amdhsa_next_free_sgpr {sgpr}
  .amdhsa_accum_offset {accum}
  .amdhsa_group_segment_fixed_size 0
  .amdhsa_kernarg_size 80
  .amdhsa_user_sgpr_count 2
  .amdhsa_user_sgpr_kernarg_segment_ptr 1
  .amdhsa_system_sgpr_workgroup_id_x 1
.end_amdhsa_kernel
"""
```

```python
from asmlib import *
from layout import *


def wave_reduce_add(A, r, tmp, sbase):
    A.nop(2)
    A.e(f"v_add_f32 v{r}, v{r}, v{r} quad_perm:[1,0,3,2] row_mask:0xf bank_mask:0xf")
    A.nop(2)
    A.e(f"v_add_f32 v{r}, v{r}, v{r} quad_perm:[2,3,0,1] row_mask:0xf bank_mask:0xf")
    A.nop(2)
    A.e(f"v_add_f32 v{r}, v{r}, v{r} row_half_mirror row_mask:0xf bank_mask:0xf")
    A.nop(2)
    A.e(f"v_add_f32 v{r}, v{r}, v{r} row_mirror row_mask:0xf bank_mask:0xf")
    A.nop(2)
    for k in range(4):
        A.e(f"v_readlane_b32 s{sbase+k}, v{r}, {16*k}")
    A.nop(2)
    A.e(f"v_mov_b32 v{tmp}, s{sbase}")
    for k in range(1, 4):
        A.e(f"v_add_f32 v{tmp}, s{sbase+k}, v{tmp}")


def gen_k0(PF=True):
    A = Asm("k0")
    done = "L_k0_done"
    A.e("s_cmp_ge_u32 s2, 512")
    A.e(f"s_cbranch_scc1 {done}")
    A.stamp_begin(48)
    A.stamp_mid(48, 0)
    A.stamp_mid(48, 1)
    A.e("s_load_dwordx2 s[4:5], s[0:1], 0")
    A.e("s_load_dwordx2 s[6:7], s[0:1], 72")
    if PF:
        A.e("s_load_dwordx2 s[26:27], s[0:1], 8")
        A.e("s_load_dwordx2 s[28:29], s[0:1], 32")
        A.e("s_load_dwordx2 s[30:31], s[0:1], 40")
    A.e("v_and_b32 v1, 63, v0")
    A.e("v_lshrrev_b32 v2, 6, v0")
    A.e("s_lshl_b32 s3, s2, 2")
    A.e("v_add_u32 v2, s3, v2")
    A.e("v_lshlrev_b32 v2, 11, v2")
    A.e("v_lshl_add_u32 v2, v1, 4, v2")
    A.e("s_waitcnt lgkmcnt(0)")
    A.srd(8, 4, 2048 * 1024 * 2)
    A.srd(12, 6, WS_BYTES)
    A.e("buffer_load_dwordx4 v[4:7], v2, s[8:11], 0 offen")
    A.e("buffer_load_dwordx4 v[8:11], v2, s[8:11], 0 offen offset:1024")
    A.e("s_mov_b32 s24, 0xffff0000")
    npf = 0
    if PF:
        PFROWS = 256
        A.srd(32, 26, PFROWS * 3072 * 2)
        A.srd(36, 28, PFROWS * 3584 * 2)
        A.srd(40, 30, PFROWS * 3584 * 2)
        A.e("v_lshrrev_b32 v3, 6, v0")
        A.e("v_add_u32 v3, s3, v3")
        A.e("v_lshlrev_b32 v13, 10, v3")
        A.e("v_lshl_add_u32 v13, v1, 4, v13")
        A.e(f"buffer_load_dwordx4 v[64:67], v13, s[32:35], 0 offen")
        A.e(f"buffer_load_dwordx4 v[68:71], v13, s[36:39], 0 offen")
        A.e(f"buffer_load_dwordx4 v[72:75], v13, s[40:43], 0 offen")
        npf = 3
    A.e(f"s_waitcnt vmcnt({npf})")
    for i in range(8):
        A.e(f"v_lshlrev_b32 v{16+2*i}, 16, v{4+i}")
        A.e(f"v_and_b32 v{17+2*i}, s24, v{4+i}")
    for i in range(8):
        A.e(f"v_add_f32 v{32+i}, v{16+2*i}, v{17+2*i}")
    for i in range(4):
        A.e(f"v_add_f32 v{32+i}, v{32+i}, v{36+i}")
    A.e("v_add_f32 v32, v32, v34")
    A.e("v_add_f32 v33, v33, v35")
    A.e("v_add_f32 v40, v32, v33")
    wave_reduce_add(A, 40, 41, 16)
    A.e(f"v_mul_f32 v41, {hex(f32bits(1.0/1024))}, v41")
    for i in range(16):
        A.e(f"v_sub_f32 v{48+i}, v{16+i}, v41")
    for i in range(4):
        A.e(f"v_mul_f32 v{32+i}, v{48+i}, v{48+i}")
    for i in range(4, 16):
        A.e(f"v_fmac_f32 v{32+(i%4)}, v{48+i}, v{48+i}")
    A.e("v_add_f32 v32, v32, v33")
    A.e("v_add_f32 v34, v34, v35")
    A.e("v_add_f32 v40, v32, v34")
    wave_reduce_add(A, 40, 42, 16)
    A.e(f"v_mul_f32 v42, {hex(f32bits(1.0/1024))}, v42")
    A.e("v_cvt_pk_bf16_f32 v43, v41, v42")
    A.e("v_lshlrev_b32 v44, 16, v43")
    A.e("v_and_b32 v45, s24, v43")
    A.e(f"v_add_f32 v45, {hex(f32bits(1e-5))}, v45")
    A.e("v_cvt_pk_bf16_f32 v45, v45, v45")
    A.e("v_and_b32 v45, s24, v45")
    A.e("v_sqrt_f32 v45, v45")
    A.nop(1)
    A.e("v_cvt_pk_bf16_f32 v45, v45, v45")
    A.e("v_and_b32 v45, s24, v45")
    A.e("v_rcp_f32 v45, v45")
    for i in range(16):
        A.e(f"v_sub_f32 v{48+i}, v{16+i}, v44")
    for i in range(8):
        A.e(f"v_cvt_pk_bf16_f32 v{32+i}, v{48+2*i}, v{49+2*i}")
    for i in range(8):
        A.e(f"v_lshlrev_b32 v{48+2*i}, 16, v{32+i}")
        A.e(f"v_and_b32 v{49+2*i}, s24, v{32+i}")
    for i in range(16):
        A.e(f"v_mul_f32 v{48+i}, v{48+i}, v45")
    for i in range(8):
        A.e(f"v_cvt_pk_bf16_f32 v{4+i}, v{48+2*i}, v{49+2*i}")
    assert WS_XN == 0
    A.e("s_cmp_ge_u32 s2, 64")
    A.e("s_cbranch_scc1 L_k0_noflag")
    A.e("v_lshrrev_b32 v3, 6, v0")
    A.e("v_add_u32 v3, s3, v3")
    A.e("v_lshlrev_b32 v3, 6, v3")
    A.e(f"v_add_u32 v3, {WS_FLAG}, v3")
    A.e("v_mov_b32 v12, 0")
    A.e("buffer_store_dword v12, v3, s[12:15], 0 offen")
    A.label("L_k0_noflag")
    A.e("buffer_store_dwordx4 v[4:7], v2, s[12:15], 0 offen")
    A.e("buffer_store_dwordx4 v[8:11], v2, s[12:15], 0 offen offset:1024")
    A.stamp_end(48, 12, 16, 0, wshift=2)
    A.label(done)
    A.e("s_endpgm")
    return A.text(), dict(vgpr=112, sgpr=64, accum=112)
```

```python
from asmlib import *
from layout import *

XA = 0
XA_SLOT = 16384
QKVA = 65536
QKV_SLOT = 6144
GUA = QKVA + 4 * QKV_SLOT
GU_U = 7296
GU_SLOT = 14592
LDS_BYTES = GUA + 4 * GU_SLOT

NST = 32

S_WQKV, S_WG, S_WU, S_WS = 4, 6, 8, 10
SRD_WS = 12
SRD_B = [16, 20, 24]
S_J, S_I, S_W, S_WM = 28, 29, 30, 31
S_SOFFA = 32
S_SOFFB = [33, 34, 35]
S_STRB = [36, 37, 38]
S_M0A = [40, 44]
S_M0B = [48, 52, 56]
S_CNT = 60
S_T = 62
S_C0 = 72

V_LANE = 1
V_X = [2, 3]
V_WQ, V_WG = 4, 5
V_OFFA = [6, 7]
V_OFFB = [8, 9, 10]
V_T = 11
V_XF = 16
V_WF = 32
V_E = 52


def xf(buf, mb):
    return V_XF + (buf * 2 + mb) * 4


def wf(b):
    return V_WF + b * 4


V_ACC = 96


def acc(b, mb):
    return V_ACC + (b * 2 + mb) * 16


S_TS = [84, 85, 86]


def setup_bslot_pre(A, slot, tbase):
    t, tl, tmp = S_TS[slot], S_T + 1, S_T + 2
    A.c(f"B slot {slot} setup, t = {tbase} + wm")
    A.e(f"s_add_u32 s{t}, s{S_WM}, {tbase}")
    A.e(f"s_sub_u32 s{tl}, s{t}, 6")
    A.e(f"s_mov_b32 s{S_STRB[slot]}, {32*7168}")
    A.e(f"s_mov_b32 s{tmp}, {GUA}")
    A.e(f"s_mov_b32 s{tmp+1}, {GU_SLOT}")
    A.e(f"s_sub_u32 s{tmp+3}, s{t}, 13")
    A.e(f"s_cmp_ge_u32 s{t}, 13")
    A.e(f"s_cselect_b32 s{tl}, s{tmp+3}, s{tl}")
    A.e(f"s_cselect_b32 s{tmp}, {GUA+GU_U}, s{tmp}")
    A.e(f"s_cmp_lt_u32 s{t}, 6")
    A.e(f"s_cselect_b32 s{tl}, s{t}, s{tl}")
    A.e(f"s_cselect_b32 s{S_STRB[slot]}, {32*6144}, s{S_STRB[slot]}")
    A.e(f"s_cselect_b32 s{tmp}, {QKVA}, s{tmp}")
    A.e(f"s_cselect_b32 s{tmp+1}, {QKV_SLOT}, s{tmp+1}")
    A.e(f"s_cselect_b64 s[{tmp+4}:{tmp+5}], -1, 0")
    A.e(f"s_lshl_b32 s{tmp+2}, s{tl}, 10")
    A.e(f"s_add_u32 s{S_M0B[slot]}, s{tmp}, s{tmp+2}")
    for r in range(1, 4):
        A.e(f"s_add_u32 s{S_M0B[slot]+r}, s{S_M0B[slot]+r-1}, s{tmp+1}")
    A.e(f"s_mov_b32 s{S_SOFFB[slot]}, 0")
    idx, k, c, o1, o2 = V_T, V_T + 1, V_T + 2, V_T + 3, V_T + 4
    A.e(f"s_lshl_b32 s{tmp+2}, s{tl}, 6")
    A.e(f"v_add_u32 v{idx}, s{tmp+2}, v{V_LANE}")
    A.e(f"v_mul_u32_u24 v{k}, 5462, v{idx}")
    A.e(f"v_lshrrev_b32 v{k}, 16, v{k}")
    A.e(f"v_mul_u32_u24 v{c}, 12, v{k}")
    A.e(f"v_sub_u32 v{c}, v{idx}, v{c}")
    A.e(f"v_mul_u32_u24 v{o1}, 6144, v{k}")
    A.e(f"v_lshrrev_b32 v{k}, 2, v{c}")
    A.e(f"v_lshl_add_u32 v{o1}, v{k}, 11, v{o1}")
    A.e(f"v_and_b32 v{k}, 3, v{c}")
    A.e(f"v_lshl_add_u32 v{o1}, v{k}, 4, v{o1}")
    A.e(f"s_lshl_b32 s{tmp+2}, s{S_J}, 6")
    A.e(f"v_add_u32 v{o1}, s{tmp+2}, v{o1}")
    A.e(f"v_mul_u32_u24 v{k}, 4682, v{idx}")
    A.e(f"v_lshrrev_b32 v{k}, 16, v{k}")
    A.e(f"v_mul_u32_u24 v{c}, 14, v{k}")
    A.e(f"v_sub_u32 v{c}, v{idx}, v{c}")
    A.e(f"v_mul_u32_u24 v{o2}, 7168, v{k}")
    A.e(f"v_lshl_add_u32 v{o2}, v{c}, 4, v{o2}")
    A.e(f"s_mul_i32 s{tmp+2}, s{S_J}, 224")
    A.e(f"v_add_u32 v{o2}, s{tmp+2}, v{o2}")
    A.e(f"v_cndmask_b32 v{V_OFFB[slot]}, v{o2}, v{o1}, s[{tmp+4}:{tmp+5}]")


def setup_bslot_post(A, slot, tbase):
    t = S_TS[slot]
    d = SRD_B[slot]
    lo, hi = tbase, tbase + 3
    kinds = []
    if lo < 6:
        kinds.append("Q")
    if hi >= 6 and lo < 13:
        kinds.append("G")
    if hi >= 13:
        kinds.append("U")
    ptr = {"Q": S_WQKV, "G": S_WG, "U": S_WU}
    nb = {"Q": 1024 * 3072 * 2, "G": 1024 * 3584 * 2, "U": 1024 * 3584 * 2}
    k0 = kinds[0]
    A.e(f"s_mov_b32 s{d}, s{ptr[k0]}")
    A.e(f"s_mov_b32 s{d+1}, s{ptr[k0]+1}")
    A.e(f"s_mov_b32 s{d+2}, {nb[k0]}")
    A.e(f"s_mov_b32 s{d+3}, 0x00020000")
    if len(kinds) > 1:
        k1 = kinds[1]
        thr = 6 if k1 == "G" else 13
        A.e(f"s_cmp_ge_u32 s{t}, {thr}")
        A.e(f"s_cselect_b32 s{d}, s{ptr[k1]}, s{d}")
        A.e(f"s_cselect_b32 s{d+1}, s{ptr[k1]+1}, s{d+1}")
        A.e(f"s_cselect_b32 s{d+2}, {nb[k1]}, s{d+2}")
    A.e(f"s_and_b32 s{d+1}, s{d+1}, 0xffff")


def dma_list(path):
    l = [("A", 0), ("A", 1), ("B", 0), ("B", 1)]
    if path == 0:
        l.append(("B", 2))
    return l


def emit_dma_m0(A, op, ring):
    kind, i = op
    sreg = (S_M0A[i] if kind == "A" else S_M0B[i]) + ring
    A.e(f"s_mov_b32 m0, s{sreg}")


def emit_dma(A, op):
    kind, i = op
    if kind == "A":
        A.e(f"buffer_load_dwordx4 v{V_OFFA[i]}, s[{SRD_WS}:{SRD_WS+3}], s{S_SOFFA} offen lds")
    else:
        d = SRD_B[i]
        A.e(f"buffer_load_dwordx4 v{V_OFFB[i]}, s[{d}:{d+3}], s{S_SOFFB[i]} offen lds")


S_WDP = 100
S_PFC = 61
SRD_WD = 84
S_WDOFF = 39
V_L16 = 11
V_PFD = 12


def nB(path):
    return len([1 for (k, i) in dma_list(path) if k == "B"])


S_PFD = [88 - 8, 88 - 7, 88 - 6]
S_IH = 83


def emit_prefetch(A, path):
    skip = A.newlabel("pfskip")
    A.e(f"s_cmp_eq_u32 s{S_PFC}, s{S_IH}")
    A.e(f"s_cbranch_scc0 {skip}")
    k = 0
    for (kind, i) in dma_list(path):
        if kind == "B":
            d = SRD_B[i]
            A.e(f"s_add_u32 s{S_T}, s{S_PFD[i]}, s{S_SOFFB[i]}")
            A.e(f"buffer_load_dwordx4 v[{V_E+4*k}:{V_E+4*k+3}], v{V_OFFB[i]}, s[{d}:{d+3}], s{S_T} offen")
            k += 1
    A.label(skip)
    A.e(f"s_xor_b32 s{S_PFC}, s{S_PFC}, 1")
    A.e(f"buffer_load_dwordx4 v[{V_E+12}:{V_E+15}], v{V_L16}, s[{SRD_WD}:{SRD_WD+3}], s{S_WDOFF} offen")
    A.e(f"s_add_u32 s{S_WDOFF}, s{S_WDOFF}, {2*MB}")


def emit_dma_advance(A, path):
    A.e(f"s_add_u32 s{S_SOFFA}, s{S_SOFFA}, 64")
    for (kind, i) in dma_list(path):
        if kind == "B":
            A.e(f"s_add_u32 s{S_SOFFB[i]}, s{S_SOFFB[i]}, s{S_STRB[i]}")


def blocks_of(path):
    if path == 0:
        return [("Q", 0), ("K", 1), ("V", 2), ("G", 0), ("G", 1)]
    return [("G", 2), ("G", 3), ("G", 4), ("G", 5), ("G", 6)]


def emit_xreads(A, buf, ring, s_):
    for mb in range(2):
        A.e(f"ds_read_b128 {v(xf(buf, mb), 4)}, v{V_X[s_]} offset:{XA + ring*XA_SLOT + mb*2048}")


def emit_wreads(A, bi, blk, ring, s_):
    kind, idx = blk
    for rd in range(2):
        if kind == "G":
            off = ring * GU_SLOT + (16 * s_ + 4 * rd) * 224 + idx * 32
            A.e(f"ds_read_b64_tr_b16 {v(wf(bi)+2*rd, 2)}, v{V_WG} offset:{off}")
        else:
            off = ring * QKV_SLOT + (16 * s_ + 4 * rd) * 192 + idx * 64
            A.e(f"ds_read_b64_tr_b16 {v(wf(bi)+2*rd, 2)}, v{V_WQ} offset:{off}")


def emit_mfma(A, bi, blk, mb, buf, zero=False):
    kind, _ = blk
    D = v(acc(bi, mb), 16)
    C = "0" if zero else D
    W = v(wf(bi), 4)
    X = v(xf(buf, mb), 4)
    if kind == "V":
        A.e(f"v_mfma_f32_32x32x16_bf16 {D}, {X}, {W}, {C}")
    else:
        A.e(f"v_mfma_f32_32x32x16_bf16 {D}, {W}, {X}, {C}")


def emit_stage(A, path, ring, issue_dma, vm_wait, last, first=False, pf=False, pretail=False):
    blks = blocks_of(path)
    dl = dma_list(path)
    nb = len(blks)
    for s_ in range(2):
        has_next = not (last and s_ == 1)
        nring = ring if s_ == 0 else (ring + 1) % 4
        ns = s_ ^ 1
        if s_ == 1 and has_next:
            A.e(f"s_waitcnt vmcnt({vm_wait})")
            A.e("s_barrier")
        frag_pf = has_next and not (pretail and s_ == 1)
        if frag_pf:
            emit_xreads(A, ns, nring, ns)
        dma_now = (s_ == 1 and issue_dma) or (s_ == 0 and first)
        dring = (ring + 3) % 4 if s_ == 1 else (ring + 2) % 4
        for bi, blk in enumerate(blks):
            cnt = 10 if frag_pf else 2 * (nb - 1 - bi)
            A.e(f"s_waitcnt lgkmcnt({cnt})")
            do_dma = dma_now and bi < len(dl)
            if do_dma:
                emit_dma_m0(A, dl[bi], dring)
            emit_mfma(A, bi, blk, 0, s_, zero=(first and s_ == 0))
            if do_dma:
                emit_dma(A, dl[bi])
            if pf and s_ == 1 and bi == nb - 1:
                emit_prefetch(A, path)
            emit_mfma(A, bi, blk, 1, s_, zero=(first and s_ == 0))
            if frag_pf:
                emit_wreads(A, bi, blk, nring, ns)
        if dma_now:
            emit_dma_advance(A, path)


VA = V_E + 32


def emit_epilogue_setup(A, path):
    st = S_T
    A.c("epilogue setup")
    A.e(f"s_lshl_b32 s{st}, s{S_I}, 3")
    A.e(f"s_lshl_b32 s{st+1}, s{S_WM}, 1")
    A.e(f"s_add_u32 s{st}, s{st}, s{st+1}")
    A.e(f"s_mul_i32 s{st+1}, s{st}, 288")
    A.e(f"s_mul_i32 s{st+2}, s{S_J}, 7")
    A.e(f"s_add_u32 s{st+1}, s{st+1}, s{st+2}")
    A.e(f"s_lshl_b32 s{st+1}, s{st+1}, 10")
    A.e(f"s_add_u32 s{st+1}, s{st+1}, {WS_OH + 64*1024}")
    A.e(f"v_lshlrev_b32 v{VA}, 4, v{V_LANE}")
    A.e(f"v_add_u32 v{VA}, s{st+1}, v{VA}")
    A.e(f"v_add_u32 v{VA+1}, {288*1024}, v{VA}")
    if path == 0:
        A.e(f"s_lshl_b32 s{st+1}, s{S_J}, 6")
        A.e(f"s_add_u32 s{st+1}, s{st+1}, s{st}")
        A.e(f"s_lshl_b32 s{st+2}, s{st+1}, 11")
        A.e(f"s_add_u32 s{st+2}, s{st+2}, {WS_QF}")
        A.e(f"s_lshl_b32 s{st+3}, s{st+1}, 12")
        A.e(f"s_add_u32 s{st+3}, s{st+3}, {WS_KV}")
        A.e(f"v_lshlrev_b32 v{VA+2}, 4, v{V_LANE}")
        A.e(f"v_add_u32 v{VA+3}, s{st+3}, v{VA+2}")
        A.e(f"v_add_u32 v{VA+2}, s{st+2}, v{VA+2}")
        A.e(f"v_add_u32 v{VA+4}, 4096, v{VA+3}")
    A.e(f"s_mov_b32 s{S_C0+4}, {hex(f32bits(-math.log2(math.e)))}")
    A.e(f"s_mov_b32 s{S_C0+5}, {hex(f32bits(-math.log2(math.e)))}")
    A.e(f"s_mov_b32 s{S_C0+6}, {hex(f32bits(QSCALE))}")
    A.e(f"s_mov_b32 s{S_C0+7}, {hex(f32bits(QSCALE))}")
    A.e(f"s_mov_b32 s{S_C0}, 1.0")
    A.e(f"s_mov_b32 s{S_C0+1}, 1.0")


import os
STORE_FLAGS = os.environ.get("K1SF", " sc1")


def epilogue_ops(path, bi):
    kind, idx = blocks_of(path)[bi]
    ws = f"s[{SRD_WS}:{SRD_WS+3}]"
    cn = s(S_C0 + 4, 2)
    cq = s(S_C0 + 6, 2)
    c1 = s(S_C0, 2)
    ops = []
    for mb in range(2):
        ac = acc(bi, mb)
        U = V_E + 16 * mb
        if kind == "G":
            for r in range(0, 8, 2):
                ops.append(f"v_pk_mul_f32 {v(U+r,2)}, {v(ac+r,2)}, {cn}")
            for r in range(8):
                ops.append(f"v_exp_f32 v{U+r}, v{U+r}")
            for r in range(0, 8, 2):
                ops.append(f"v_pk_mul_f32 {v(ac+r,2)}, {v(ac+r,2)}, {v(ac+8+r,2)}")
            for r in range(0, 8, 2):
                ops.append(f"v_pk_add_f32 {v(U+r,2)}, {v(U+r,2)}, {c1}")
            for r in range(8):
                ops.append(f"v_rcp_f32 v{U+r}, v{U+r}")
            ops.append(f"s_mov_b32 s{S_C0+2}, {idx*1024}")
            for r in range(0, 8, 2):
                ops.append(f"v_pk_mul_f32 {v(ac+r,2)}, {v(ac+r,2)}, {v(U+r,2)}")
            for r in range(4):
                ops.append(f"v_cvt_pk_bf16_f32 v{U+8+r}, v{ac+2*r}, v{ac+2*r+1}")
            ops.append(f"buffer_store_dwordx4 {v(U+8,4)}, v{VA+mb}, {ws}, s{S_C0+2} offen{STORE_FLAGS}")
        else:
            if kind == "Q":
                for r in range(0, 16, 2):
                    ops.append(f"v_pk_mul_f32 {v(ac+r,2)}, {v(ac+r,2)}, {cq}")
            for r in range(8):
                ops.append(f"v_cvt_pk_bf16_f32 v{U+r}, v{ac+2*r}, v{ac+2*r+1}")
            if kind == "Q":
                for t in range(2):
                    ops.append(f"buffer_store_dwordx4 {v(U+4*t,4)}, v{VA+2}, {ws}, 0 offen offset:{mb*2048 + t*1024}{STORE_FLAGS}")
            else:
                o = 0 if kind == "K" else 2048
                for t in range(2):
                    ops.append(f"buffer_store_dwordx4 {v(U+4*t,4)}, v{VA+3+mb}, {ws}, 0 offen offset:{o + t*1024}{STORE_FLAGS}")
    return ops


def emit_tail(A, path, n):
    blks = blocks_of(path)
    steps = [(bi, r, s_) for bi in range(len(blks)) for r in (1, 2, 3) for s_ in range(2)]

    def reads(k):
        bi, r, s_ = steps[k]
        emit_xreads(A, k % 2, r, s_)
        kind, idx = blks[bi]
        for rd in range(2):
            if kind == "G":
                off = r * GU_SLOT + (16 * s_ + 4 * rd) * 224 + idx * 32
                A.e(f"ds_read_b64_tr_b16 {v(wf(k % 2)+2*rd, 2)}, v{V_WG} offset:{off}")
            else:
                off = r * QKV_SLOT + (16 * s_ + 4 * rd) * 192 + idx * 64
                A.e(f"ds_read_b64_tr_b16 {v(wf(k % 2)+2*rd, 2)}, v{V_WQ} offset:{off}")

    reads(0)
    pend = []
    for k, (bi, r, s_) in enumerate(steps):
        if k + 1 < len(steps):
            if k + 1 == 2:
                A.e(f"s_waitcnt vmcnt({n})")
                A.e("s_barrier")
            if k + 1 == 4:
                A.e("s_waitcnt vmcnt(0)")
                A.e("s_barrier")
            reads(k + 1)
            A.e("s_waitcnt lgkmcnt(4)")
        else:
            A.e("s_waitcnt lgkmcnt(0)")
        kind, _ = blks[bi]
        for mb in range(2):
            D = v(acc(bi, mb), 16)
            W = v(wf(k % 2), 4)
            X = v(xf(k % 2, mb), 4)
            if kind == "V":
                A.e(f"v_mfma_f32_32x32x16_bf16 {D}, {X}, {W}, {D}")
            else:
                A.e(f"v_mfma_f32_32x32x16_bf16 {D}, {W}, {X}, {D}")
            pos = (k % 6) * 2 + mb
            if pend and pos >= 2:
                if pos == 2:
                    A.nop(4)
                take = -(-len(pend) // (12 - pos))
                for op in pend[:take]:
                    A.e(op)
                pend = pend[take:]
        if k % 6 == 5:
            assert not pend
            pend = epilogue_ops(path, bi)
    A.nop(16)
    for op in pend:
        A.e(op)


def emit_path(A, path):
    dl = dma_list(path)
    n = len(dl)
    blks = blocks_of(path)
    slots = [(0, 0), (1, 4), (2, 8)] if path == 0 else [(0, 12), (1, 16)]
    for sl, tb in slots:
        setup_bslot_pre(A, sl, tb)
    A.e(f"s_mov_b32 s{S_CNT}, 0")
    A.e(f"s_mov_b32 s{S_PFC}, 0")
    A.e(f"s_lshr_b32 s{S_IH}, s{S_I}, 2")
    A.e(f"s_and_b32 s{S_T}, s{S_I}, 3")
    A.e(f"s_add_u32 s{S_T}, s{S_T}, 5")
    for sl, tb in slots:
        A.e(f"s_mul_i32 s{S_PFD[sl]}, s{S_T}, s{S_STRB[sl]}")
    A.e("s_waitcnt lgkmcnt(0)")
    A.srd(SRD_WS, S_WS, WS_BYTES)
    for sl, tb in slots:
        setup_bslot_post(A, sl, tb)
    A.srd(SRD_WD, S_WDP, 3584 * 1024 * 2)
    A.e(f"s_lshl_b32 s{S_WDOFF}, s2, 3")
    A.e(f"s_add_u32 s{S_WDOFF}, s{S_WDOFF}, s{S_W}")
    A.e(f"s_lshl_b32 s{S_WDOFF}, s{S_WDOFF}, 10")
    A.e(f"s_sub_u32 s{S_WDOFF}, s{S_WDOFF}, {6*MB}")
    A.e(f"v_lshlrev_b32 v{V_L16}, 4, v{V_LANE}")
    for st in range(2):
        for op in dl:
            emit_dma_m0(A, op, st)
            A.nop(1)
            emit_dma(A, op)
        emit_dma_advance(A, path)
    w = n
    A.e(f"s_waitcnt vmcnt({w})")
    A.e("s_barrier")
    emit_xreads(A, 0, 0, 0)
    for bi, blk in enumerate(blks):
        emit_wreads(A, bi, blk, 0, 0)
    A.stamp_mid(88, 0)
    for r in range(4):
        emit_stage(A, path, r, True, w, False, first=(r == 0), pf=(r == 0))
    loop = A.newlabel("loop")
    A.label(loop)
    for r in range(4):
        emit_stage(A, path, r, True, w, False, pf=(r == 0))
    A.e(f"s_add_u32 s{S_CNT}, s{S_CNT}, 1")
    A.e(f"s_cmp_lt_u32 s{S_CNT}, 6")
    A.e(f"s_cbranch_scc1 {loop}")
    emit_epilogue_setup(A, path)
    emit_stage(A, path, 0, True, w, False, pretail=True)
    A.stamp_mid(88, 1)
    emit_tail(A, path, n)
    A.stamp_end(80 if False else 88, SRD_WS, V_E, 1)
    A.e("s_endpgm")


def gen_k1():
    A = Asm("k1")
    done = "L_k1_done"
    A.e("s_cmp_ge_u32 s2, 256")
    A.e(f"s_cbranch_scc1 {done}")
    A.stamp_begin(88)
    A.e(f"s_load_dwordx2 s[{S_WQKV}:{S_WQKV+1}], s[0:1], 8")
    A.e(f"s_load_dwordx2 s[{S_WG}:{S_WG+1}], s[0:1], 32")
    A.e(f"s_load_dwordx2 s[{S_WU}:{S_WU+1}], s[0:1], 40")
    A.e(f"s_load_dwordx2 s[{S_WS}:{S_WS+1}], s[0:1], 72")
    A.e(f"s_load_dwordx2 s[{S_WDP}:{S_WDP+1}], s[0:1], 48")
    A.e(f"s_and_b32 s{S_J}, s2, 31")
    A.e(f"s_lshr_b32 s{S_I}, s2, 5")
    A.e(f"v_and_b32 v{V_LANE}, 63, v0")
    A.e(f"v_lshrrev_b32 v{V_T}, 6, v0")
    A.nop(1)
    A.e(f"v_readfirstlane_b32 s{S_W}, v{V_T}")
    A.nop(4)
    A.e(f"s_and_b32 s{S_WM}, s{S_W}, 3")
    t0, t1, t2 = V_T, V_T + 1, V_T + 2
    A.e(f"v_and_b32 v{t0}, 31, v{V_LANE}")
    A.e(f"s_lshl_b32 s{S_T}, s{S_WM}, 6")
    A.e(f"v_add_u32 v{t0}, s{S_T}, v{t0}")
    A.e(f"v_lshlrev_b32 v{t0}, 6, v{t0}")
    A.e(f"v_lshrrev_b32 v{t1}, 5, v{V_LANE}")
    A.e(f"v_bfe_u32 v{t2}, v{V_LANE}, 2, 2")
    A.e(f"v_xor_b32 v{t1}, v{t1}, v{t2}")
    A.e(f"v_lshl_add_u32 v{V_X[0]}, v{t1}, 4, v{t0}")
    A.e(f"v_xor_b32 v{t1}, 2, v{t1}")
    A.e(f"v_lshl_add_u32 v{V_X[1]}, v{t1}, 4, v{t0}")
    A.e(f"v_lshrrev_b32 v{t0}, 5, v{V_LANE}")
    A.e(f"v_lshlrev_b32 v{t0}, 3, v{t0}")
    A.e(f"v_bfe_u32 v{t1}, v{V_LANE}, 2, 2")
    A.e(f"v_add_u32 v{t0}, v{t0}, v{t1}")
    A.e(f"v_bfe_u32 v{t1}, v{V_LANE}, 4, 1")
    A.e(f"v_and_b32 v{t2}, 3, v{V_LANE}")
    A.e(f"v_lshlrev_b32 v{t2}, 3, v{t2}")
    A.e(f"v_mul_u32_u24 v{V_WQ}, 192, v{t0}")
    A.e(f"v_lshl_add_u32 v{V_WQ}, v{t1}, 5, v{V_WQ}")
    A.e(f"v_add_u32 v{V_WQ}, v{V_WQ}, v{t2}")
    A.e(f"v_add_u32 v{V_WQ}, {QKVA}, v{V_WQ}")
    A.e(f"v_mul_u32_u24 v{V_WG}, 224, v{t0}")
    A.e(f"v_mul_u32_u24 v{t1}, {GU_U}, v{t1}")
    A.e(f"v_add_u32 v{V_WG}, v{V_WG}, v{t1}")
    A.e(f"v_add_u32 v{V_WG}, v{V_WG}, v{t2}")
    A.e(f"v_add_u32 v{V_WG}, {GUA}, v{V_WG}")
    A.e(f"s_lshl_b32 s{S_T}, s{S_I}, 8")
    A.e(f"s_lshl_b32 s{S_T+1}, s{S_W}, 5")
    A.e(f"s_add_u32 s{S_T}, s{S_T}, s{S_T+1}")
    A.e(f"v_lshrrev_b32 v{t0}, 2, v{V_LANE}")
    A.e(f"v_add_u32 v{t0}, s{S_T}, v{t0}")
    A.e(f"v_lshlrev_b32 v{t0}, 11, v{t0}")
    A.e(f"v_and_b32 v{t1}, 3, v{V_LANE}")
    A.e(f"v_bfe_u32 v{t2}, v{V_LANE}, 4, 2")
    A.e(f"v_xor_b32 v{t1}, v{t1}, v{t2}")
    A.e(f"v_lshl_add_u32 v{V_OFFA[0]}, v{t1}, 4, v{t0}")
    A.e(f"v_add_u32 v{V_OFFA[1]}, {16*2048}, v{V_OFFA[0]}")
    assert WS_XN == 0
    A.e(f"s_lshl_b32 s{S_T}, s{S_W}, 11")
    for r in range(4):
        A.e(f"s_add_u32 s{S_M0A[0]+r}, s{S_T}, {XA + r*XA_SLOT}")
        A.e(f"s_add_u32 s{S_M0A[1]+r}, s{S_T}, {XA + r*XA_SLOT + 1024}")
    A.e(f"s_mov_b32 s{S_SOFFA}, 0")
    p1 = "L_k1_path1"
    A.e(f"s_cmp_ge_u32 s{S_W}, 4")
    A.e(f"s_cbranch_scc1 {p1}")
    emit_path(A, 0)
    A.label(p1)
    emit_path(A, 1)
    A.label(done)
    A.e("s_endpgm")
    return A.text(), dict(vgpr=256, sgpr=102, accum=256, lds=LDS_BYTES)
```

```python
import os
from asmlib import *
from layout import *

LDS_BYTES = 81920
LMAX = 2.0 ** 100
PRIO_A = int(os.environ.get("PRIO_A", "0"))
PRIO_G = int(os.environ.get("PRIO_G", "0"))

CHUNK = 16384
NSLOT = 4
NCH = 16

S_WS = 4
SRD_WS = 8
S_J, S_QC, S_W = 12, 13, 14
S_SOFF = 15
S_M0 = 16
S_CNT = 17
S_T = 18
S_TH = 24
S_KVB = 25

V_LANE = 1
V_RD = 2
V_OFF = 3
V_T = 4
V_Q = 8
V_KF = 24
V_VF = 40
V_S = 56
V_P = 88
V_O = 104
V_NM = 136
V_LA = 168
V_SEL = 176
V_L = 180
V_DM = 181
V_OUT = 182
V_M = 183
V_F = 184
V_PF = 188


def kf(b):
    return V_KF + 8 * b


def vf(b):
    return V_VF + 8 * b


def sreg(b):
    return V_S + 16 * b


def preg(b):
    return V_P + 8 * b


def lds_off(t):
    return ((t // 4) % NSLOT) * CHUNK + (t % 4) * 4096


def emit_kread(A, t, buf):
    o = lds_off(t)
    A.e(f"ds_read_b128 {v(kf(buf),4)}, v{V_RD} offset:{o}")
    A.e(f"ds_read_b128 {v(kf(buf)+4,4)}, v{V_RD} offset:{o+1024}")


def emit_vread(A, t, buf):
    o = lds_off(t)
    A.e(f"ds_read_b128 {v(vf(buf),4)}, v{V_RD} offset:{o+2048}")
    A.e(f"ds_read_b128 {v(vf(buf)+4,4)}, v{V_RD} offset:{o+3072}")


def softmax_ops(sb):
    S = sreg(sb)
    P = preg(sb)
    ops = []
    for g in range(4):
        for r in range(4):
            ops.append(f"v_exp_f32 v{S+4*g+r}, v{S+4*g+r}")
        if g > 0:
            q = g - 1
            ops.append(f"v_cvt_pk_bf16_f32 v{P+2*q}, v{S+4*q}, v{S+4*q+1}")
            ops.append(f"v_cvt_pk_bf16_f32 v{P+2*q+1}, v{S+4*q+2}, v{S+4*q+3}")
    ops += [f"v_cvt_pk_bf16_f32 v{P+6}, v{S+12}, v{S+13}", f"v_cvt_pk_bf16_f32 v{P+7}, v{S+14}, v{S+15}"]
    return ops


def emit_max16(A, S, dst, tmp):
    A.e(f"v_max3_f32 v{dst}, v{S}, v{S+1}, v{S+2}")
    for r in range(3, 15, 2):
        A.e(f"v_max3_f32 v{dst}, v{dst}, v{S+r}, v{S+r+1}")
    A.e(f"v_max_f32 v{dst}, v{dst}, v{S+15}")
    A.e(f"v_mov_b32 v{tmp}, v{dst}")
    A.nop(2)
    A.e(f"v_permlane32_swap_b32 v{dst}, v{tmp}")
    A.nop(2)
    A.e(f"v_max_f32 v{dst}, v{dst}, v{tmp}")


def emit_chunk_dma(A, slot):
    A.e(f"s_add_u32 m0, s{S_M0}, {slot*CHUNK}")
    A.nop(1)
    for u in range(4):
        A.e(f"buffer_load_dwordx4 v{V_OFF}, s[{SRD_WS}:{SRD_WS+3}], s{S_SOFF} offen offset:{u*1024} lds")
    A.e(f"s_add_u32 s{S_SOFF}, s{S_SOFF}, {CHUNK}")


def qk_mfmas(u):
    t, qb = u // 2, u % 2
    Sn = v(sreg(u % 2), 16)
    kb = t % 2
    return [
        f"v_mfma_f32_32x32x16_bf16 {Sn}, {v(kf(kb),4)}, {v(V_Q+8*qb,4)}, {v(V_NM+16*qb,16)}",
        f"v_mfma_f32_32x32x16_bf16 {Sn}, {v(kf(kb)+4,4)}, {v(V_Q+8*qb+4,4)}, {Sn}",
    ]


def pv_mfmas(u):
    t, qb = u // 2, u % 2
    vb = t % 2
    pp = preg(u % 2)
    O = v(V_O + 16 * qb, 16)
    LA = v(V_LA + 4 * qb, 4)
    return [
        f"v_mfma_f32_32x32x16_bf16 {O}, {v(vf(vb),4)}, {v(pp,4)}, {O}",
        f"v_mfma_f32_16x16x32_bf16 {LA}, {v(V_SEL,4)}, {v(pp,4)}, {LA}",
        f"v_mfma_f32_32x32x16_bf16 {O}, {v(vf(vb)+4,4)}, {v(pp+4,4)}, {O}",
        f"v_mfma_f32_16x16x32_bf16 {LA}, {v(V_SEL,4)}, {v(pp+4,4)}, {LA}",
    ]


def emit_unit(A, u, barrier_vm, issue_slot, skip_qk=False, extra=None):
    t, qb = u // 2, u % 2
    ops = softmax_ops(u % 2)
    mf = []
    if u + 1 < 128 and not skip_qk:
        mf += qk_mfmas(u + 1)
    if u > 0:
        mf += pv_mfmas(u - 1)
    A.c(f"unit {u}")
    if qb == 1:
        A.e("s_waitcnt lgkmcnt(0)")
    if barrier_vm is not None:
        A.e(f"s_waitcnt vmcnt({barrier_vm})")
        A.e("s_barrier")
    pos = [0, 4, 8, 12, 14, 18] if len(mf) == 6 else ([0, 4] if len(mf) == 2 else [2, 8, 12, 18])
    k = 0
    for i, op in enumerate(ops):
        while k < len(mf) and i == pos[k]:
            A.e(mf[k])
            k += 1
        A.e(op)
        if i == 1 and qb == 0:
            if t + 1 < 64:
                emit_kread(A, t + 1, (t + 1) % 2)
            if t > 0:
                emit_vread(A, t, t % 2)
        if i == 10 and issue_slot is not None:
            emit_chunk_dma(A, issue_slot)
        if i == 16 and extra:
            extra()
    assert k == len(mf), (k, len(mf))


def emit_fallback(A, label, back, qb):
    ws = f"s[{SRD_WS}:{SRD_WS+3}]"
    S = sreg(0)
    P = preg(0)
    VO = V_O + 16 * qb
    VQ = V_Q + 8 * qb
    A.label(label)
    A.nop(16)
    for r in range(16):
        A.e(f"v_mov_b32 v{VO+r}, 0")
    A.e(f"v_mov_b32 v{V_L}, 0")
    A.e(f"v_mov_b32 v{V_M}, 0xff7fffff")
    A.e(f"v_add_u32 v{V_T+3}, s{S_KVB}, v{V_RD}")
    A.e(f"s_mov_b32 s{S_CNT}, 0")
    loop = A.newlabel("fb")
    A.label(loop)
    A.e(f"buffer_load_dwordx4 {v(kf(0),4)}, v{V_T+3}, {ws}, s{S_CNT} offen")
    A.e(f"buffer_load_dwordx4 {v(kf(0)+4,4)}, v{V_T+3}, {ws}, s{S_CNT} offen offset:1024")
    A.e(f"buffer_load_dwordx4 {v(vf(0),4)}, v{V_T+3}, {ws}, s{S_CNT} offen offset:2048")
    A.e(f"buffer_load_dwordx4 {v(vf(0)+4,4)}, v{V_T+3}, {ws}, s{S_CNT} offen offset:3072")
    A.e("s_waitcnt vmcnt(0)")
    Sv = v(S, 16)
    A.e(f"v_mfma_f32_32x32x16_bf16 {Sv}, {v(kf(0),4)}, {v(VQ,4)}, 0")
    A.e(f"v_mfma_f32_32x32x16_bf16 {Sv}, {v(kf(0)+4,4)}, {v(VQ+4,4)}, {Sv}")
    A.nop(16)
    emit_max16(A, S, V_DM, V_T)
    A.e(f"v_max_f32 v{V_DM}, v{V_DM}, v{V_M}")
    A.e(f"v_sub_f32 v{V_F}, v{V_M}, v{V_DM}")
    A.e(f"v_exp_f32 v{V_F}, v{V_F}")
    A.e(f"v_mov_b32 v{V_M}, v{V_DM}")
    for r in range(16):
        A.e(f"v_sub_f32 v{S+r}, v{S+r}, v{V_DM}")
    for r in range(16):
        A.e(f"v_exp_f32 v{S+r}, v{S+r}")
    for r in range(16):
        A.e(f"v_mul_f32 v{VO+r}, v{VO+r}, v{V_F}")
    A.e(f"v_mul_f32 v{V_L}, v{V_L}, v{V_F}")
    for r in range(16):
        A.e(f"v_add_f32 v{V_L}, v{V_L}, v{S+r}")
    for q in range(8):
        A.e(f"v_cvt_pk_bf16_f32 v{P+q}, v{S+2*q}, v{S+2*q+1}")
    A.nop(2)
    O = v(VO, 16)
    A.e(f"v_mfma_f32_32x32x16_bf16 {O}, {v(vf(0),4)}, {v(P,4)}, {O}")
    A.e(f"v_mfma_f32_32x32x16_bf16 {O}, {v(vf(0)+4,4)}, {v(P+4,4)}, {O}")
    A.nop(16)
    A.e(f"s_add_u32 s{S_CNT}, s{S_CNT}, 4096")
    A.e(f"s_cmp_lt_u32 s{S_CNT}, {64*4096}")
    A.e(f"s_cbranch_scc1 {loop}")
    A.e(f"v_mov_b32 v{V_T}, v{V_L}")
    A.nop(2)
    A.e(f"v_permlane32_swap_b32 v{V_L}, v{V_T}")
    A.nop(2)
    A.e(f"v_add_f32 v{V_L}, v{V_L}, v{V_T}")
    A.e(f"s_branch {back}")


def emit_attn(A):
    A.stamp_begin(32)
    A.e(f"s_load_dwordx2 s[{S_WS}:{S_WS+1}], s[0:1], 72")
    A.e("s_load_dwordx2 s[48:49], s[0:1], 16")
    if PRIO_A:
        A.e(f"s_setprio {PRIO_A}")
    A.e(f"s_and_b32 s{S_J}, s2, 31")
    A.e(f"s_lshr_b32 s{S_QC}, s2, 5")
    A.e(f"v_and_b32 v{V_LANE}, 63, v0")
    A.e(f"v_lshrrev_b32 v{V_T}, 6, v0")
    A.nop(1)
    A.e(f"v_readfirstlane_b32 s{S_W}, v{V_T}")
    A.nop(4)
    A.e(f"v_lshlrev_b32 v{V_RD}, 4, v{V_LANE}")
    A.e(f"s_lshl_b32 s{S_KVB}, s{S_J}, 18")
    A.e(f"s_add_u32 s{S_KVB}, s{S_KVB}, {WS_KV}")
    A.e(f"s_lshl_b32 s{S_M0}, s{S_W}, 12")
    A.e(f"s_add_u32 s{S_T}, s{S_KVB}, s{S_M0}")
    A.e(f"v_add_u32 v{V_OFF}, s{S_T}, v{V_RD}")
    A.e(f"s_mov_b32 s{S_SOFF}, 0")
    A.e(f"s_mov_b32 s{S_TH}, {hex(f32bits(LMAX))}")
    A.e(f"s_lshl_b32 s{S_T}, s{S_J}, 6")
    A.e(f"s_lshl_b32 s{S_T+1}, s{S_QC}, 3")
    A.e(f"s_lshl_b32 s{S_T+2}, s{S_W}, 1")
    A.e(f"s_add_u32 s{S_T+1}, s{S_T+1}, s{S_T+2}")
    A.e(f"s_add_u32 s{S_T}, s{S_T}, s{S_T+1}")
    A.e(f"s_lshl_b32 s{S_T}, s{S_T}, 11")
    A.e(f"s_add_u32 s{S_T}, s{S_T}, {WS_QF}")
    A.e(f"v_add_u32 v{V_T}, s{S_T}, v{V_RD}")
    A.e(f"s_mul_i32 s{S_T+1}, s{S_T+1}, 288")
    A.e(f"s_lshl_b32 s{S_T+2}, s{S_J}, 1")
    A.e(f"s_add_u32 s{S_T+1}, s{S_T+1}, s{S_T+2}")
    A.e(f"s_lshl_b32 s{S_T+1}, s{S_T+1}, 10")
    A.e(f"s_add_u32 s{S_T+1}, s{S_T+1}, {WS_OH}")
    A.e(f"v_add_u32 v{V_OUT}, s{S_T+1}, v{V_RD}")
    for r in range(32):
        A.e(f"v_mov_b32 v{V_O+r}, 0")
    for r in range(8):
        A.e(f"v_mov_b32 v{V_LA+r}, 0")
    A.e(f"v_and_b32 v{V_T+1}, 31, v{V_LANE}")
    A.e(f"v_cmp_eq_u32 vcc, 0, v{V_T+1}")
    A.e(f"v_cmp_eq_u32 s[{S_T+2}:{S_T+3}], 17, v{V_T+1}")
    A.nop(2)
    A.e(f"s_or_b64 vcc, vcc, s[{S_T+2}:{S_T+3}]")
    A.e(f"v_mov_b32 v{V_T+1}, 0x3f803f80")
    A.nop(2)
    for r in range(4):
        A.e(f"v_cndmask_b32 v{V_SEL+r}, 0, v{V_T+1}, vcc")
    A.e("s_waitcnt lgkmcnt(0)")
    A.srd(SRD_WS, S_WS, WS_BYTES)
    ws = f"s[{SRD_WS}:{SRD_WS+3}]"
    emit_chunk_dma(A, 0)
    for q in range(4):
        A.e(f"buffer_load_dwordx4 {v(V_Q+4*q,4)}, v{V_T}, {ws}, 0 offen offset:{q*1024}")
    emit_chunk_dma(A, 1)
    A.srd(52, 48, 1024 * 1024 * 2)
    A.e("s_lshl_b32 s48, s2, 2")
    A.e(f"s_add_u32 s48, s48, s{S_W}")
    A.e("s_lshl_b32 s48, s48, 11")
    A.e("s_waitcnt vmcnt(4)")
    A.e("s_barrier")
    emit_kread(A, 0, 0)
    emit_vread(A, 0, 0)
    emit_chunk_dma(A, 2)
    A.e("s_waitcnt lgkmcnt(0)")
    for qb in range(2):
        Sq = v(sreg(qb), 16)
        A.e(f"v_mfma_f32_32x32x16_bf16 {Sq}, {v(kf(0),4)}, {v(V_Q+8*qb,4)}, 0")
        A.e(f"v_mfma_f32_32x32x16_bf16 {Sq}, {v(kf(0)+4,4)}, {v(V_Q+8*qb+4,4)}, {Sq}")
    A.nop(16)
    for qb in range(2):
        emit_max16(A, sreg(qb), V_DM, V_T)
        for r in range(16):
            A.e(f"v_sub_f32 v{V_NM+16*qb+r}, 0, v{V_DM}")
        for r in range(16):
            A.e(f"v_sub_f32 v{sreg(qb)+r}, v{sreg(qb)+r}, v{V_DM}")
    A.stamp_mid(32, 0)

    def pf():
        A.e(f"buffer_load_dwordx4 {v(V_PF,4)}, v{V_RD}, s[52:55], s48 offen")
        A.e(f"buffer_load_dwordx4 {v(V_PF+4,4)}, v{V_RD}, s[52:55], s48 offen offset:1024")

    for u in range(128):
        t, qb = u // 2, u % 2
        bvm = None
        isl = None
        extra = None
        if qb == 0 and (t + 1) % 4 == 0 and t + 1 < 64:
            c = (t + 1) // 4
            issued = min(c + 1, NCH - 1)
            bvm = 4 * (issued - c)
            if c + 2 < NCH:
                isl = (c + 2) % NSLOT
        if u == 100:
            pass
        if u == 2 * 55 + 1:
            extra = pf
        if qb == 0 and t == 59:
            bvm = 2
        emit_unit(A, u, bvm, isl, skip_qk=(u == 0), extra=extra)
    A.stamp_mid(32, 1)
    A.nop(2)
    for m in pv_mfmas(127):
        A.e(m)
    A.e(f"v_and_b32 v{V_T+3}, 15, v{V_LANE}")
    A.e(f"v_lshlrev_b32 v{V_T+3}, 2, v{V_T+3}")
    A.e(f"v_and_b32 v{V_T+1}, 16, v{V_LANE}")
    A.e(f"v_cmp_ne_u32 s[{S_T+2}:{S_T+3}], 0, v{V_T+1}")
    A.nop(16)
    fbs = []
    for qb in range(2):
        VO = V_O + 16 * qb
        A.e(f"v_and_b32 v{V_T+3}, 15, v{V_LANE}")
        A.e(f"v_lshlrev_b32 v{V_T+3}, 2, v{V_T+3}")
        A.e(f"ds_bpermute_b32 v{V_T+1}, v{V_T+3}, v{V_LA+4*qb}")
        A.e(f"ds_bpermute_b32 v{V_T+2}, v{V_T+3}, v{V_LA+4*qb+1}")
        A.e("s_waitcnt lgkmcnt(0)")
        A.e(f"v_cndmask_b32 v{V_L}, v{V_T+1}, v{V_T+2}, s[{S_T+2}:{S_T+3}]")
        A.e(f"v_mul_f32 v{V_T}, 0, v{VO}")
        for r in range(1, 16):
            A.e(f"v_fmac_f32 v{V_T}, 0, v{VO+r}")
        A.e(f"v_add_f32 v{V_T}, v{V_T}, v{V_L}")
        A.e(f"v_cmp_ngt_f32 vcc, s{S_TH}, v{V_T}")
        fb = A.newlabel("fallback")
        back = A.newlabel("back")
        fbs.append((fb, back, qb))
        A.e(f"s_cbranch_vccnz {fb}")
        A.label(back)
        A.e(f"v_rcp_f32 v{V_L}, v{V_L}")
        A.nop(1)
        for r in range(16):
            A.e(f"v_mul_f32 v{VO+r}, v{VO+r}, v{V_L}")
        for r in range(8):
            A.e(f"v_cvt_pk_bf16_f32 v{V_NM+8*qb+r}, v{VO+2*r}, v{VO+2*r+1}")
        if qb == 1:
            A.e(f"v_add_u32 v{V_OUT}, {288*1024}, v{V_OUT}")
        A.e(f"buffer_store_dwordx4 {v(V_NM+8*qb,4)}, v{V_OUT}, {ws}, 0 offen sc1")
        A.e(f"buffer_store_dwordx4 {v(V_NM+8*qb+4,4)}, v{V_OUT}, {ws}, 0 offen offset:1024 sc1")
    A.stamp_end(32, SRD_WS, V_S, 2, wshift=2)
    A.e("s_endpgm")
    for fb, back, qb in fbs:
        emit_fallback(A, fb, back, qb)


R = 5
D = R - 1
B_SLOT = 16384
NST = 28

G_WD, G_WS = 4, 6
G_SRD_WS, G_SRD_B = 8, 12
G_I, G_JN, G_W, G_SK, G_TILE = 16, 17, 18, 19, 20
G_SOFFA, G_SOFFB = 21, 22
G_M0B = 23
G_CNT = 24
G_T = 26

GV_LANE = 1
GV_WA = [2, 3, 4, 5]
GV_WAH = [6, 7, 8, 9]
GV_OFFA = 10
GV_OFFB = [11, 12, 13, 14]
GV_T = 16
GV_AF = 20
GV_BF = 100
GV_ACC = 132
GV_PA = [196, 197, 198, 199]


def af(st, q):
    return GV_AF + (st * 4 + q) * 4


def bfr(f):
    return GV_BF + (f % 8) * 4


def gacc(nb):
    return GV_ACC + nb * 16


def g_load_ops(ring):
    ws = f"s[{G_SRD_WS}:{G_SRD_WS+3}]"
    ops = []
    for u in range(4):
        ops.append([f"s_add_u32 m0, s{G_M0B}, {ring*B_SLOT + u*1024}", "s_nop 0",
                    f"buffer_load_dwordx4 v{GV_OFFB[u]}, s[{G_SRD_B}:{G_SRD_B+3}], s{G_SOFFB} offen lds"])
    for q in range(4):
        g = [f"buffer_load_dwordx4 {v(af(ring, q),4)}, v{GV_OFFA}, {ws}, s{G_SOFFA} offen offset:{q*1024}"]
        if q == 3:
            g.append(f"s_add_u32 s{G_SOFFA}, s{G_SOFFA}, 4096")
            g.append(f"s_add_u32 s{G_SOFFB}, s{G_SOFFB}, {64*2048}")
        ops.append(g)
    return ops


def g_bread(A, ring, f):
    q, nb = f >> 2, f & 3
    for rd in range(2):
        o = ring * B_SLOT + (16 * q + 8 * rd) * 256
        r = GV_WA[nb]
        if o >= 65536:
            o -= 65536
            r = GV_WAH[nb]
        A.e(f"ds_read_b64_tr_b16 {v(bfr(f)+2*rd,2)}, v{r} offset:{o}")


def g_stage(A, ring, vmw, rings, last=False, first=False):
    ops0 = g_load_ops(rings[0]) if rings[0] is not None else []
    ops1 = g_load_ops(rings[1]) if rings[1] is not None else []
    for f in range(16):
        q, nb = f >> 2, f & 3
        if f == 8 and not last:
            A.e(f"s_waitcnt vmcnt({vmw})")
            A.e("s_barrier")
        cnt = 2 * (15 - f) if (last and f >= 8) else 14
        A.e(f"s_waitcnt lgkmcnt({cnt})")
        Dd = v(gacc(nb), 16)
        C = "0" if (first and q == 0) else Dd
        A.e(f"v_mfma_f32_32x32x16_bf16 {Dd}, {v(bfr(f),4)}, {v(af(ring, q),4)}, {C}")
        if f < 8:
            g_bread(A, ring, f + 8)
        elif not last:
            g_bread(A, (ring + 1) % R, f - 8)
        ops = ops0 if f < 8 else ops1
        if ops:
            for l in ops[f % 8]:
                A.e(l)


def emit_down(A):
    A.stamp_begin(32)
    A.e(f"s_load_dwordx2 s[{G_WD}:{G_WD+1}], s[0:1], 48")
    A.e(f"s_load_dwordx2 s[{G_WS}:{G_WS+1}], s[0:1], 72")
    if PRIO_G:
        A.e(f"s_setprio {PRIO_G}")
    t = G_T
    A.e(f"s_and_b32 s{t}, s2, 7")
    A.e(f"s_lshr_b32 s{t+1}, s2, 3")
    A.e(f"s_and_b32 s{t+1}, s{t+1}, 31")
    A.e(f"s_and_b32 s{G_SK}, s{t+1}, 1")
    A.e(f"s_lshr_b32 s{t+1}, s{t+1}, 1")
    A.e(f"s_lshr_b32 s{t+2}, s{t}, 1")
    A.e(f"s_lshl_b32 s{t+2}, s{t+2}, 2")
    A.e(f"s_and_b32 s{t+3}, s{t+1}, 3")
    A.e(f"s_add_u32 s{G_I}, s{t+2}, s{t+3}")
    A.e(f"s_and_b32 s{t+2}, s{t}, 1")
    A.e(f"s_lshl_b32 s{t+2}, s{t+2}, 2")
    A.e(f"s_lshr_b32 s{t+3}, s{t+1}, 2")
    A.e(f"s_add_u32 s{G_JN}, s{t+2}, s{t+3}")
    A.e(f"s_lshl_b32 s{G_TILE}, s{G_I}, 3")
    A.e(f"s_add_u32 s{G_TILE}, s{G_TILE}, s{G_JN}")
    A.e(f"v_and_b32 v{GV_LANE}, 63, v0")
    A.e(f"v_lshrrev_b32 v{GV_T}, 6, v0")
    A.nop(1)
    A.e(f"v_readfirstlane_b32 s{G_W}, v{GV_T}")
    A.nop(4)
    t0, t1, t2, t3 = GV_T, GV_T + 1, GV_T + 2, GV_T + 3
    A.e(f"v_lshrrev_b32 v{t0}, 5, v{GV_LANE}")
    A.e(f"v_lshlrev_b32 v{t0}, 2, v{t0}")
    A.e(f"v_bfe_u32 v{t1}, v{GV_LANE}, 2, 2")
    A.e(f"v_add_u32 v{t0}, v{t0}, v{t1}")
    A.e(f"v_lshlrev_b32 v{t0}, 8, v{t0}")
    A.e(f"v_bfe_u32 v{t2}, v{GV_LANE}, 4, 1")
    A.e(f"v_lshl_add_u32 v{t0}, v{t2}, 5, v{t0}")
    A.e(f"v_and_b32 v{t2}, 3, v{GV_LANE}")
    A.e(f"v_lshl_add_u32 v{t0}, v{t2}, 3, v{t0}")
    for nb in range(4):
        A.e(f"v_xor_b32 v{t2}, {nb}, v{t1}")
        A.e(f"v_lshl_add_u32 v{GV_WA[nb]}, v{t2}, 6, v{t0}")
        A.e(f"v_add_u32 v{GV_WAH[nb]}, 0x10000, v{GV_WA[nb]}")
    A.e(f"s_lshl_b32 s{t}, s{G_I}, 2")
    A.e(f"s_add_u32 s{t}, s{t}, s{G_W}")
    A.e(f"s_mul_i32 s{t}, s{t}, {288*1024}")
    A.e(f"s_mul_i32 s{t+1}, s{G_SK}, {112*1024}")
    A.e(f"s_add_u32 s{t}, s{t}, s{t+1}")
    A.e(f"s_add_u32 s{t}, s{t}, {WS_OH + 64*1024}")
    A.e(f"v_lshlrev_b32 v{t0}, 4, v{GV_LANE}")
    A.e(f"v_add_u32 v{GV_OFFA}, s{t}, v{t0}")
    A.e(f"s_lshl_b32 s{t}, s{G_TILE}, 1")
    A.e(f"s_add_u32 s{t}, s{t}, s{G_SK}")
    A.e(f"s_lshl_b32 s{t}, s{t}, 2")
    A.e(f"s_add_u32 s{t}, s{t}, s{G_W}")
    A.e(f"s_lshl_b32 s{t}, s{t}, 14")
    A.e(f"s_add_u32 s{t}, s{t}, {WS_P}")
    A.e(f"v_add_u32 v{GV_PA[0]}, s{t}, v{t0}")
    for nb in range(1, 4):
        A.e(f"v_add_u32 v{GV_PA[nb]}, 4096, v{GV_PA[nb-1]}")
    A.e(f"v_lshrrev_b32 v{t0}, 4, v{GV_LANE}")
    A.e(f"s_lshl_b32 s{t}, s{G_W}, 4")
    A.e(f"v_add_u32 v{t1}, s{t}, v{t0}")
    A.e(f"v_lshlrev_b32 v{t1}, 11, v{t1}")
    A.e(f"v_bfe_u32 v{t2}, v{GV_LANE}, 2, 2")
    A.e(f"v_xor_b32 v{t2}, v{t2}, v{t0}")
    A.e(f"v_lshl_add_u32 v{t1}, v{t2}, 6, v{t1}")
    A.e(f"v_and_b32 v{t2}, 3, v{GV_LANE}")
    A.e(f"v_lshl_add_u32 v{t1}, v{t2}, 4, v{t1}")
    A.e(f"s_lshl_b32 s{t+2}, s{G_JN}, 8")
    A.e(f"v_add_u32 v{GV_OFFB[0]}, s{t+2}, v{t1}")
    for u in range(1, 4):
        A.e(f"v_add_u32 v{GV_OFFB[u]}, {4*2048}, v{GV_OFFB[u-1]}")
    A.e(f"s_lshl_b32 s{G_M0B}, s{G_W}, 12")
    A.e(f"s_mov_b32 s{G_SOFFA}, 0")
    A.e(f"s_mul_i32 s{G_SOFFB}, s{G_SK}, {NST*64*2048}")
    A.e("s_waitcnt lgkmcnt(0)")
    A.srd(G_SRD_WS, G_WS, WS_BYTES)
    A.srd(G_SRD_B, G_WD, 3584 * 1024 * 2)
    for st in range(2):
        for g in g_load_ops(st):
            for l in g:
                A.e(l)
    A.e("s_waitcnt vmcnt(8)")
    A.e("s_barrier")
    for f in range(8):
        g_bread(A, 0, f)
    A.stamp_mid(32, 0)
    g_stage(A, 0, 8, (2, 3), first=True)
    g_stage(A, 1, 16, (4, 0))
    W = 8 * (D - 2)
    g_stage(A, 2, W, (None, 1))
    A.e(f"s_mov_b32 s{G_CNT}, 0")
    loop = A.newlabel("gloop")
    A.label(loop)
    for r in range(R):
        tt = 3 + r
        g_stage(A, tt % R, W, (None, (tt + D) % R))
    A.e(f"s_add_u32 s{G_CNT}, s{G_CNT}, 1")
    A.e(f"s_cmp_lt_u32 s{G_CNT}, 4")
    A.e(f"s_cbranch_scc1 {loop}")
    for tt in range(23, NST):
        issue = tt + D < NST
        out = min(tt + D - 1, NST - 1) - (tt + 1)
        g_stage(A, tt % R, 8 * max(out, 0), (None, (tt + D) % R if issue else None), last=(tt == NST - 1))
    A.stamp_mid(32, 1)
    A.nop(16)
    ws = f"s[{G_SRD_WS}:{G_SRD_WS+3}]"
    for nb in range(4):
        for g in range(4):
            A.e(f"buffer_store_dwordx4 {v(gacc(nb)+4*g,4)}, v{GV_PA[nb]}, {ws}, 0 offen offset:{g*1024} sc1")
    A.stamp_end(32, G_SRD_WS, GV_AF, 2, wshift=2)
    A.e("s_endpgm")


def gen_k2f():
    A = Asm("k2")
    A.e("s_cmp_ge_u32 s2, 512")
    A.e("s_cbranch_scc1 L_k2_done")
    A.e("s_cmp_ge_u32 s2, 256")
    A.e("s_cbranch_scc1 L_k2_down")
    emit_attn(A)
    A.label("L_k2_down")
    emit_down(A)
    A.label("L_k2_done")
    A.e("s_endpgm")
    return A.text(), dict(vgpr=256, sgpr=64, accum=256, lds=LDS_BYTES)
```

```python
import os
from asmlib import *
from layout import *

EXP = os.environ.get("K3EXP", "").split(",")
N0 = int(os.environ.get("K3N0", "40"))
N1 = 72 - N0
R = 6
D = R - 1
B_SLOT = 16384
LDS_BYTES = R * B_SLOT

S_X, S_WO, S_WD, S_OUT, S_WS = 4, 6, 8, 10, 12
SRD_WS, SRD_B, SRD_X, SRD_OUT = 16, 20, 24, 28
S_I, S_JN, S_W, S_SK = 32, 33, 34, 35
S_SOFFA, S_SOFFB, S_STG = 37, 38, 39
S_M0B = 41
S_CNT = 42
S_WDHI = 43
S_T = 44
S_TILE = 64

V_LANE = 1
V_WA = [2, 3, 4, 5]
V_WAH = [6, 7, 8, 9]
V_OFFA = 10
V_OFFB = [11, 12, 13, 14]
V_T = 16
V_AF = 20
V_BF = 116
V_ACC = 148
V_XR = 212
V_GA = 244
V_PA = [245, 246, 247, 248]
NV = 256
A_P = 0


def af(st, q):
    return V_AF + (st * 4 + q) * 4


def bfr(f):
    return V_BF + (f % 8) * 4


def acc(nb):
    return V_ACC + nb * 16


def load_ops(ring):
    ws = f"s[{SRD_WS}:{SRD_WS+3}]"
    ops = []
    pre = [
        f"s_cmp_eq_u32 s{S_STG}, 16",
        f"s_cselect_b32 s{SRD_B}, s{S_WD}, s{SRD_B}",
        f"s_cselect_b32 s{SRD_B+1}, s{S_WDHI}, s{SRD_B+1}",
        f"s_cselect_b32 s{SRD_B+2}, {3584*1024*2}, s{SRD_B+2}",
        f"s_cselect_b32 s{S_SOFFB}, 0, s{S_SOFFB}",
    ]
    for u in range(4):
        g = []
        if u == 0:
            g += pre
        g.append(f"s_add_u32 m0, s{S_M0B}, {ring*B_SLOT + u*1024}")
        g.append("s_nop 0")
        g.append(f"buffer_load_dwordx4 v{V_OFFB[u]}, s[{SRD_B}:{SRD_B+3}], s{S_SOFFB} offen lds")
        ops.append(g)
    for q in range(4):
        g = [f"buffer_load_dwordx4 {v(af(ring, q),4)}, v{V_OFFA}, {ws}, s{S_SOFFA} offen offset:{q*1024}"]
        if q == 3:
            g.append(f"s_add_u32 s{S_SOFFA}, s{S_SOFFA}, 4096")
            g.append(f"s_add_u32 s{S_SOFFB}, s{S_SOFFB}, {64*2048}")
            g.append(f"s_add_u32 s{S_STG}, s{S_STG}, 1")
        ops.append(g)
    return ops


def emit_bread(A, ring, f):
    q, nb = f >> 2, f & 3
    for rd in range(2):
        o = ring * B_SLOT + (16 * q + 8 * rd) * 256
        r = V_WA[nb]
        if o >= 65536:
            o -= 65536
            r = V_WAH[nb]
        A.e(f"ds_read_b64_tr_b16 {v(bfr(f)+2*rd,2)}, v{r} offset:{o}")


def emit_stage(A, ring, issue, vmw, last=False, first=False, rings=None, mid_hook=None, post_hook=None):
    if rings is None:
        rings = (None, (ring + D) % R if issue else None)
    ops0 = load_ops(rings[0]) if rings[0] is not None else []
    ops1 = load_ops(rings[1]) if rings[1] is not None else []
    for f in range(16):
        q, nb = f >> 2, f & 3
        if f == 8 and not last:
            if mid_hook:
                mid_hook()
            A.e(f"s_waitcnt vmcnt({vmw})")
            A.e("s_barrier")
            if post_hook:
                post_hook()
        if last and f >= 8:
            cnt = 2 * (15 - f)
        else:
            cnt = 14
        A.e(f"s_waitcnt lgkmcnt({cnt})")
        Dd = v(acc(nb), 16)
        C = "0" if (first and q == 0) else Dd
        if "nomfma" not in EXP:
            A.e(f"v_mfma_f32_32x32x16_bf16 {Dd}, {v(bfr(f),4)}, {v(af(ring, q),4)}, {C}")
        if f < 8:
            emit_bread(A, ring, f + 8)
        elif not last:
            emit_bread(A, (ring + 1) % R, f - 8)
        ops = ops0 if f < 8 else ops1
        if ops:
            for l in ops[f % 8]:
                A.e(l)


def emit_all(A, n, hook_stage=None, mid_hook=None, post_hook=None, nextra=0):
    W = 8 * (D - 2)
    emit_stage(A, 0, True, 8, first=True, rings=(2, 3))
    emit_stage(A, 1, True, 16, rings=(4, 5))
    emit_stage(A, 2, True, 24, rings=(0, 1))
    for r in range(3, R):
        emit_stage(A, r, True, W)
    L = (n - 12) // 6
    A.e(f"s_mov_b32 s{S_CNT}, 0")
    loop = A.newlabel("loop")
    A.label(loop)
    for r in range(R):
        emit_stage(A, r, True, W)
    A.e(f"s_add_u32 s{S_CNT}, s{S_CNT}, 1")
    A.e(f"s_cmp_lt_u32 s{S_CNT}, {L}")
    A.e(f"s_cbranch_scc1 {loop}")
    for t in range(6 + 6 * L, n):
        issue = t + D < n
        out = min(t + D - 1, n - 1) - (t + 1)
        vmw = 8 * max(out, 0)
        if hook_stage is not None and t > hook_stage:
            vmw += nextra
        hk = hook_stage is not None and t == hook_stage
        assert not (hk and issue)
        emit_stage(A, t % R, issue, vmw, last=(t == n - 1),
                   mid_hook=mid_hook if hk else None, post_hook=post_hook if hk else None)


S_FLAG = 65


def gen_k3():
    A = Asm("k3")
    done = "L_k3_done"
    A.e("s_cmp_ge_u32 s2, 256")
    A.e(f"s_cbranch_scc1 {done}")
    A.stamp_begin(52)
    A.e(f"s_load_dwordx2 s[{S_X}:{S_X+1}], s[0:1], 0")
    A.e(f"s_load_dwordx2 s[{S_WO}:{S_WO+1}], s[0:1], 16")
    A.e(f"s_load_dwordx2 s[{S_WD}:{S_WD+1}], s[0:1], 48")
    A.e(f"s_load_dwordx2 s[{S_OUT}:{S_OUT+1}], s[0:1], 56")
    A.e(f"s_load_dwordx2 s[{S_WS}:{S_WS+1}], s[0:1], 72")
    t = S_T
    A.e(f"s_and_b32 s{t}, s2, 7")
    A.e(f"s_lshr_b32 s{t+1}, s2, 3")
    A.e(f"s_and_b32 s{S_SK}, s{t+1}, 1")
    A.e(f"s_lshr_b32 s{t+1}, s{t+1}, 1")
    A.e(f"s_lshr_b32 s{t+2}, s{t}, 1")
    A.e(f"s_lshl_b32 s{t+2}, s{t+2}, 2")
    A.e(f"s_and_b32 s{t+3}, s{t+1}, 3")
    A.e(f"s_add_u32 s{S_I}, s{t+2}, s{t+3}")
    A.e(f"s_and_b32 s{t+2}, s{t}, 1")
    A.e(f"s_lshl_b32 s{t+2}, s{t+2}, 2")
    A.e(f"s_lshr_b32 s{t+3}, s{t+1}, 2")
    A.e(f"s_add_u32 s{S_JN}, s{t+2}, s{t+3}")
    A.e(f"s_lshl_b32 s{S_TILE}, s{S_I}, 3")
    A.e(f"s_add_u32 s{S_TILE}, s{S_TILE}, s{S_JN}")
    A.e(f"v_and_b32 v{V_LANE}, 63, v0")
    A.e(f"v_lshrrev_b32 v{V_T}, 6, v0")
    A.nop(1)
    A.e(f"v_readfirstlane_b32 s{S_W}, v{V_T}")
    A.nop(4)
    t0, t1, t2, t3 = V_T, V_T + 1, V_T + 2, V_T + 3
    A.e(f"v_lshrrev_b32 v{t0}, 5, v{V_LANE}")
    A.e(f"v_lshlrev_b32 v{t0}, 2, v{t0}")
    A.e(f"v_bfe_u32 v{t1}, v{V_LANE}, 2, 2")
    A.e(f"v_add_u32 v{t0}, v{t0}, v{t1}")
    A.e(f"v_lshlrev_b32 v{t0}, 8, v{t0}")
    A.e(f"v_bfe_u32 v{t2}, v{V_LANE}, 4, 1")
    A.e(f"v_lshl_add_u32 v{t0}, v{t2}, 5, v{t0}")
    A.e(f"v_and_b32 v{t2}, 3, v{V_LANE}")
    A.e(f"v_lshl_add_u32 v{t0}, v{t2}, 3, v{t0}")
    for nb in range(4):
        A.e(f"v_xor_b32 v{t2}, {nb}, v{t1}")
        A.e(f"v_lshl_add_u32 v{V_WA[nb]}, v{t2}, 6, v{t0}")
        A.e(f"v_add_u32 v{V_WAH[nb]}, 0x10000, v{V_WA[nb]}")
    A.e(f"s_lshl_b32 s{t}, s{S_I}, 2")
    A.e(f"s_add_u32 s{t}, s{t}, s{S_W}")
    A.e(f"s_mul_i32 s{t}, s{t}, {288*1024}")
    A.e(f"s_mul_i32 s{t+1}, s{S_SK}, {N0*4*1024}")
    A.e(f"s_add_u32 s{t}, s{t}, s{t+1}")
    A.e(f"s_add_u32 s{t}, s{t}, {WS_OH}")
    A.e(f"v_lshlrev_b32 v{t0}, 4, v{V_LANE}")
    A.e(f"v_add_u32 v{V_OFFA}, s{t}, v{t0}")
    A.e(f"v_lshrrev_b32 v{t0}, 4, v{V_LANE}")
    A.e(f"s_lshl_b32 s{t}, s{S_W}, 4")
    A.e(f"v_add_u32 v{t1}, s{t}, v{t0}")
    A.e(f"v_lshlrev_b32 v{t1}, 11, v{t1}")
    A.e(f"v_bfe_u32 v{t2}, v{V_LANE}, 2, 2")
    A.e(f"v_xor_b32 v{t2}, v{t2}, v{t0}")
    A.e(f"v_lshl_add_u32 v{t1}, v{t2}, 6, v{t1}")
    A.e(f"v_and_b32 v{t2}, 3, v{V_LANE}")
    A.e(f"v_lshl_add_u32 v{t1}, v{t2}, 4, v{t1}")
    A.e(f"s_lshl_b32 s{t+2}, s{S_JN}, 8")
    A.e(f"v_add_u32 v{V_OFFB[0]}, s{t+2}, v{t1}")
    for u in range(1, 4):
        A.e(f"v_add_u32 v{V_OFFB[u]}, {4*2048}, v{V_OFFB[u-1]}")
    A.e(f"s_lshl_b32 s{S_M0B}, s{S_W}, 12")
    A.e(f"s_mov_b32 s{S_SOFFA}, 0")
    A.e(f"s_mul_i32 s{S_STG}, s{S_SK}, {N0}")
    A.e(f"s_mov_b32 s{S_CNT}, 0")
    A.e("s_waitcnt lgkmcnt(0)")
    A.srd(SRD_WS, S_WS, WS_BYTES)
    A.srd(SRD_B, S_WO, 1024 * 1024 * 2)
    A.e(f"s_and_b32 s{S_WDHI}, s{S_WD+1}, 0xffff")
    A.e(f"s_mov_b32 s{S_SOFFB}, 0")
    A.e(f"s_cmp_eq_u32 s{S_SK}, 1")
    A.e(f"s_cselect_b32 s{SRD_B}, s{S_WD}, s{SRD_B}")
    A.e(f"s_cselect_b32 s{SRD_B+1}, s{S_WDHI}, s{SRD_B+1}")
    A.e(f"s_cselect_b32 s{SRD_B+2}, {3584*1024*2}, s{SRD_B+2}")
    A.e(f"s_cselect_b32 s{S_SOFFB}, {(N0-16)*64*2048}, s{S_SOFFB}")
    for st in range(2):
        for g in load_ops(st):
            for l in g:
                A.e(l)
    A.srd(SRD_X, S_X, 2048 * 1024 * 2)
    A.srd(SRD_OUT, S_OUT, 2048 * 1024 * 2)
    A.e(f"s_waitcnt vmcnt(8)")
    A.e("s_barrier")
    for f in range(8):
        emit_bread(A, 0, f)
    A.stamp_mid(52, 0)
    ws = f"s[{SRD_WS}:{SRD_WS+3}]"
    A.e(f"s_lshl_b32 s{t}, s{S_I}, 7")
    A.e(f"s_lshl_b32 s{t+1}, s{S_W}, 5")
    A.e(f"s_add_u32 s{t}, s{t}, s{t+1}")
    A.e(f"v_and_b32 v{t0}, 31, v{V_LANE}")
    A.e(f"v_add_u32 v{t0}, s{t}, v{t0}")
    A.e(f"v_lshlrev_b32 v{t0}, 11, v{t0}")
    A.e(f"v_lshrrev_b32 v{t1}, 5, v{V_LANE}")
    A.e(f"v_lshl_add_u32 v{t0}, v{t1}, 3, v{t0}")
    A.e(f"s_lshl_b32 s{t}, s{S_JN}, 8")
    A.e(f"v_add_u32 v{V_GA}, s{t}, v{t0}")
    A.e(f"s_lshl_b32 s{t}, s{S_TILE}, 2")
    A.e(f"s_add_u32 s{t}, s{t}, s{S_W}")
    A.e(f"s_lshl_b32 s{t}, s{t}, 14")
    A.e(f"s_add_u32 s{t}, s{t}, {WS_XCH}")
    A.e(f"v_lshlrev_b32 v{t1}, 4, v{V_LANE}")
    A.e(f"v_add_u32 v{V_PA[0]}, s{t}, v{t1}")
    for nb in range(1, 4):
        A.e(f"v_add_u32 v{V_PA[nb]}, 4096, v{V_PA[nb-1]}")
    A.e(f"s_lshl_b32 s{S_FLAG}, s{S_TILE}, 6")
    A.e(f"s_add_u32 s{S_FLAG}, s{S_FLAG}, {WS_FLAG}")
    A.e(f"v_mov_b32 v{t3}, 0")
    snd = A.newlabel("sender")
    A.e(f"s_cmp_eq_u32 s{S_SK}, 1")
    A.e(f"s_cbranch_scc1 {snd}")

    def mid_hook():
        nopoll = A.newlabel("nopoll")
        A.e(f"s_cmp_lg_u32 s{S_W}, 0")
        A.e(f"s_cbranch_scc1 {nopoll}")
        poll = A.newlabel("poll")
        A.label(poll)
        A.e(f"buffer_load_dword v{t2}, v{t3}, {ws}, s{S_FLAG} offen sc1")
        A.e("s_waitcnt vmcnt(0)")
        A.e(f"v_readfirstlane_b32 s{t}, v{t2}")
        A.nop(4)
        A.e(f"s_cmp_eq_u32 s{t}, 1")
        A.e(f"s_cbranch_scc1 {nopoll}")
        A.e("s_sleep 1")
        A.e(f"s_branch {poll}")
        A.label(nopoll)

    def post_hook():
        for nb in range(4):
            for g in range(4):
                A.e(f"buffer_load_dwordx4 {a(A_P+(nb*4+g)*4,4)}, v{V_PA[nb]}, {ws}, 0 offen offset:{g*1024} sc1")
        for nb in range(4):
            for g in range(4):
                A.e(f"buffer_load_dwordx2 {v(V_XR+(nb*4+g)*2,2)}, v{V_GA}, s[{SRD_X}:{SRD_X+3}], 0 offen offset:{nb*64+g*16}")

    emit_all(A, N0, hook_stage=N0 - 3, mid_hook=mid_hook, post_hook=post_hook, nextra=32)
    A.stamp_mid(52, 1)
    A.e(f"s_mov_b32 s{t}, 0xffff0000")
    A.e("s_waitcnt vmcnt(0)")
    X2 = V_AF
    P2 = V_AF + 16
    A.nop(8)
    for nb in range(4):
        for q in range(8):
            A.e(f"v_lshlrev_b32 v{X2+2*q}, 16, v{V_XR+nb*8+q}")
            A.e(f"v_and_b32 v{X2+2*q+1}, s{t}, v{V_XR+nb*8+q}")
        for r in range(16):
            A.e(f"v_accvgpr_read_b32 v{P2+r}, a{A_P+nb*16+r}")
        for r in range(0, 16, 2):
            A.e(f"v_pk_add_f32 {v(X2+r,2)}, {v(X2+r,2)}, {v(P2+r,2)}")
        for r in range(0, 16, 2):
            A.e(f"v_pk_add_f32 {v(acc(nb)+r,2)}, {v(acc(nb)+r,2)}, {v(X2+r,2)}")
        for q in range(8):
            A.e(f"v_cvt_pk_bf16_f32 v{V_XR+nb*8+q}, v{acc(nb)+2*q}, v{acc(nb)+2*q+1}")
        for g in range(4):
            A.e(f"buffer_store_dwordx2 {v(V_XR+(nb*4+g)*2,2)}, v{V_GA}, s[{SRD_OUT}:{SRD_OUT+3}], 0 offen offset:{nb*64+g*16}")
    A.stamp_end(52, SRD_WS, V_AF, 3)
    A.e("s_endpgm")
    A.label(snd)
    emit_all(A, N1)
    A.stamp_mid(52, 1)
    A.nop(16)
    for nb in range(4):
        for g in range(4):
            A.e(f"buffer_store_dwordx4 {v(acc(nb)+4*g,4)}, v{V_PA[nb]}, {ws}, 0 offen offset:{g*1024} sc1")
    A.e("s_waitcnt vmcnt(0)")
    A.e("s_barrier")
    A.e(f"s_cmp_lg_u32 s{S_W}, 0")
    A.e(f"s_cbranch_scc1 L_k3_sdone")
    A.e(f"v_mov_b32 v{t2}, 1")
    A.e(f"buffer_store_dword v{t2}, v{t3}, {ws}, s{S_FLAG} offen sc1")
    A.label("L_k3_sdone")
    A.stamp_end(52, SRD_WS, V_AF, 3)
    A.label(done)
    A.e("s_endpgm")
    return A.text(), dict(vgpr=NV + 64, sgpr=72, accum=NV, lds=LDS_BYTES, block=256)
```

```python
from asmlib import *
from layout import *

R = 8
NST = 16
B_SLOT = 8192
TR_BASE = R * B_SLOT
TR_ROW = 272
TR_WAVE = 32 * TR_ROW
LDS_BYTES = TR_BASE + 4 * TR_WAVE

S_X, S_WO, S_OUT, S_WS = 4, 6, 8, 10
SRD_WS, SRD_B, SRD_X, SRD_OUT = 12, 16, 20, 24
S_I, S_JN, S_W = 28, 29, 30
S_SOFFA, S_SOFFB, S_M0B = 31, 32, 33
S_T = 36

V_LANE = 1
V_WA = [2, 3]
V_OFFA = 4
V_OFFB = [5, 6]
V_PA = [7, 8]
V_GA = 9
V_TW, V_TR = 10, 11
V_T = 12
V_AF = 16
V_BF = 144
V_ACC = 160
V_XR = 192
NV = 208
A_P = 0


def af(st, q):
    return V_AF + (st * 4 + q) * 4


def bfr(f):
    return V_BF + (f % 4) * 4


def acc(nb):
    return V_ACC + nb * 16


def load_ops(ring):
    ws = f"s[{SRD_WS}:{SRD_WS+3}]"
    ops = []
    for u in range(2):
        ops.append([f"s_add_u32 m0, s{S_M0B}, {ring*B_SLOT + u*1024}", "s_nop 0",
                    f"buffer_load_dwordx4 v{V_OFFB[u]}, s[{SRD_B}:{SRD_B+3}], s{S_SOFFB} offen lds"])
    for q in range(4):
        g = [f"buffer_load_dwordx4 {v(af(ring, q),4)}, v{V_OFFA}, {ws}, s{S_SOFFA} offen offset:{q*1024}"]
        if q == 3:
            g.append(f"s_add_u32 s{S_SOFFA}, s{S_SOFFA}, 4096")
            g.append(f"s_add_u32 s{S_SOFFB}, s{S_SOFFB}, {64*2048}")
        ops.append(g)
    return ops


def bread(A, ring, f):
    q, nb = f >> 1, f & 1
    for rd in range(2):
        o = ring * B_SLOT + (16 * q + 8 * rd) * 128
        A.e(f"ds_read_b64_tr_b16 {v(bfr(f)+2*rd,2)}, v{V_WA[nb]} offset:{o}")


def gen_k3w():
    A = Asm("k3")
    done = "L_k3_done"
    A.e("s_cmp_ge_u32 s2, 256")
    A.e(f"s_cbranch_scc1 {done}")
    A.stamp_begin(52)
    A.e(f"s_load_dwordx2 s[{S_X}:{S_X+1}], s[0:1], 0")
    A.e(f"s_load_dwordx2 s[{S_WO}:{S_WO+1}], s[0:1], 16")
    A.e(f"s_load_dwordx2 s[{S_OUT}:{S_OUT+1}], s[0:1], 56")
    A.e(f"s_load_dwordx2 s[{S_WS}:{S_WS+1}], s[0:1], 72")
    t = S_T
    A.e(f"s_and_b32 s{t}, s2, 7")
    A.e(f"s_lshr_b32 s{t+1}, s2, 3")
    A.e(f"s_lshr_b32 s{t+2}, s{t}, 1")
    A.e(f"s_lshl_b32 s{t+2}, s{t+2}, 2")
    A.e(f"s_and_b32 s{t+3}, s{t+1}, 3")
    A.e(f"s_add_u32 s{S_I}, s{t+2}, s{t+3}")
    A.e(f"s_and_b32 s{t+2}, s{t}, 1")
    A.e(f"s_lshl_b32 s{t+2}, s{t+2}, 3")
    A.e(f"s_lshr_b32 s{t+3}, s{t+1}, 2")
    A.e(f"s_add_u32 s{S_JN}, s{t+2}, s{t+3}")
    A.e(f"v_and_b32 v{V_LANE}, 63, v0")
    A.e(f"v_lshrrev_b32 v{V_T}, 6, v0")
    A.nop(1)
    A.e(f"v_readfirstlane_b32 s{S_W}, v{V_T}")
    A.nop(4)
    t0, t1, t2, t3 = V_T, V_T + 1, V_T + 2, V_T + 3
    A.e(f"v_lshrrev_b32 v{t0}, 5, v{V_LANE}")
    A.e(f"v_lshlrev_b32 v{t0}, 2, v{t0}")
    A.e(f"v_bfe_u32 v{t1}, v{V_LANE}, 2, 2")
    A.e(f"v_add_u32 v{t0}, v{t0}, v{t1}")
    A.e(f"v_lshlrev_b32 v{t0}, 7, v{t0}")
    A.e(f"v_bfe_u32 v{t2}, v{V_LANE}, 4, 1")
    A.e(f"v_lshl_add_u32 v{t0}, v{t2}, 5, v{t0}")
    A.e(f"v_and_b32 v{t2}, 3, v{V_LANE}")
    A.e(f"v_lshl_add_u32 v{t0}, v{t2}, 3, v{t0}")
    A.e(f"v_lshrrev_b32 v{t1}, 1, v{t1}")
    A.e(f"v_lshl_add_u32 v{V_WA[0]}, v{t1}, 6, v{t0}")
    A.e(f"v_xor_b32 v{t1}, 1, v{t1}")
    A.e(f"v_lshl_add_u32 v{V_WA[1]}, v{t1}, 6, v{t0}")
    A.e(f"s_lshl_b32 s{t}, s{S_I}, 2")
    A.e(f"s_add_u32 s{t}, s{t}, s{S_W}")
    A.e(f"s_mul_i32 s{t+1}, s{t}, {288*1024}")
    A.e(f"s_add_u32 s{t+1}, s{t+1}, {WS_OH}")
    A.e(f"v_lshlrev_b32 v{t0}, 4, v{V_LANE}")
    A.e(f"v_add_u32 v{V_OFFA}, s{t+1}, v{t0}")
    A.e(f"s_lshl_b32 s{t+1}, s{S_I}, 3")
    A.e(f"s_lshr_b32 s{t+2}, s{S_JN}, 1")
    A.e(f"s_add_u32 s{t+1}, s{t+1}, s{t+2}")
    A.e(f"s_lshl_b32 s{t+1}, s{t+1}, 3")
    A.e(f"s_add_u32 s{t+1}, s{t+1}, s{S_W}")
    A.e(f"s_lshl_b32 s{t+1}, s{t+1}, 14")
    A.e(f"s_and_b32 s{t+2}, s{S_JN}, 1")
    A.e(f"s_lshl_b32 s{t+2}, s{t+2}, 13")
    A.e(f"s_add_u32 s{t+1}, s{t+1}, s{t+2}")
    A.e(f"s_add_u32 s{t+1}, s{t+1}, {WS_P}")
    A.e(f"v_add_u32 v{V_PA[0]}, s{t+1}, v{t0}")
    A.e(f"v_add_u32 v{V_PA[1]}, {4*16384}, v{V_PA[0]}")
    A.e(f"v_lshrrev_b32 v{t0}, 3, v{V_LANE}")
    A.e(f"s_lshl_b32 s{t+1}, s{S_W}, 4")
    A.e(f"v_add_u32 v{t1}, s{t+1}, v{t0}")
    A.e(f"v_lshlrev_b32 v{t1}, 11, v{t1}")
    A.e(f"v_bfe_u32 v{t2}, v{V_LANE}, 2, 1")
    A.e(f"v_bfe_u32 v{t3}, v{V_LANE}, 4, 1")
    A.e(f"v_xor_b32 v{t2}, v{t2}, v{t3}")
    A.e(f"v_lshl_add_u32 v{t1}, v{t2}, 6, v{t1}")
    A.e(f"v_and_b32 v{t2}, 3, v{V_LANE}")
    A.e(f"v_lshl_add_u32 v{t1}, v{t2}, 4, v{t1}")
    A.e(f"s_lshl_b32 s{t+2}, s{S_JN}, 7")
    A.e(f"v_add_u32 v{V_OFFB[0]}, s{t+2}, v{t1}")
    A.e(f"v_add_u32 v{V_OFFB[1]}, {8*2048}, v{V_OFFB[0]}")
    A.e(f"s_lshl_b32 s{t+1}, s{t}, 5")
    A.e(f"v_add_u32 v{t1}, s{t+1}, v{t0}")
    A.e(f"v_lshlrev_b32 v{t1}, 11, v{t1}")
    A.e(f"v_and_b32 v{t2}, 7, v{V_LANE}")
    A.e(f"v_lshl_add_u32 v{t1}, v{t2}, 4, v{t1}")
    A.e(f"v_add_u32 v{V_GA}, s{t+2}, v{t1}")
    A.e(f"s_mul_i32 s{t+1}, s{S_W}, {TR_WAVE}")
    A.e(f"s_add_u32 s{t+1}, s{t+1}, {TR_BASE}")
    A.e(f"v_and_b32 v{t1}, 31, v{V_LANE}")
    A.e(f"v_mul_u32_u24 v{t1}, {TR_ROW}, v{t1}")
    A.e(f"v_lshrrev_b32 v{t3}, 5, v{V_LANE}")
    A.e(f"v_lshl_add_u32 v{t1}, v{t3}, 4, v{t1}")
    A.e(f"v_add_u32 v{V_TW}, s{t+1}, v{t1}")
    A.e(f"v_mul_u32_u24 v{t1}, {TR_ROW}, v{t0}")
    A.e(f"v_lshl_add_u32 v{t1}, v{t2}, 5, v{t1}")
    A.e(f"v_add_u32 v{V_TR}, s{t+1}, v{t1}")
    A.e(f"s_lshl_b32 s{S_M0B}, s{S_W}, 11")
    A.e(f"s_mov_b32 s{S_SOFFA}, 0")
    A.e(f"s_mov_b32 s{S_SOFFB}, 0")
    A.e("s_waitcnt lgkmcnt(0)")
    A.srd(SRD_WS, S_WS, WS_BYTES)
    A.srd(SRD_B, S_WO, 1024 * 1024 * 2)
    ws = f"s[{SRD_WS}:{SRD_WS+3}]"
    issued = []

    def issue_stage_now(st):
        for g in load_ops(st % R):
            for l in g:
                A.e(l)
        issued.extend([("st", st)] * 6)

    def wait_for(tag):
        idx = max(i for i, x in enumerate(issued) if x == tag)
        return len(issued) - 1 - idx

    issue_stage_now(0)
    issue_stage_now(1)
    A.srd(SRD_X, S_X, 2048 * 1024 * 2)
    A.srd(SRD_OUT, S_OUT, 2048 * 1024 * 2)
    A.e(f"s_waitcnt vmcnt({wait_for(('st', 0))})")
    A.e("s_barrier")
    for f in range(4):
        bread(A, 0, f)
    A.stamp_mid(52, 0)
    nxt = 2
    extra_done = False
    for st in range(NST):
        ring = st % R
        last = st == NST - 1
        pend0, pend1 = [], []
        if nxt < NST and nxt - R + 1 <= st - 1:
            pend0 = [(nxt, g) for g in load_ops(nxt % R)]
            nxt += 1
        for f in range(8):
            q, nb = f >> 1, f & 1
            if f == 4 and not last:
                A.e(f"s_waitcnt vmcnt({wait_for(('st', st + 1))})")
                A.e("s_barrier")
                if nxt < NST and nxt - R + 1 <= st:
                    pend1 = [(nxt, g) for g in load_ops(nxt % R)]
                    nxt += 1
                elif not extra_done and nxt >= NST:
                    pend1 = []
                    for sk in range(2):
                        for nb2 in range(2):
                            for g in range(4):
                                pend1.append(("P", [f"buffer_load_dwordx4 {a(A_P+((sk*2+nb2)*4+g)*4,4)}, v{V_PA[sk]}, {ws}, s{t+4+nb2} offen offset:{g*1024}"]))
                    for k in range(4):
                        pend1.append(("P", [f"buffer_load_dwordx4 {v(V_XR+4*k,4)}, v{V_GA}, s[{SRD_X}:{SRD_X+3}], s{t+6+k} offen"]))
                    A.e(f"s_mov_b32 s{t+4}, 0")
                    A.e(f"s_mov_b32 s{t+5}, 4096")
                    for k in range(4):
                        A.e(f"s_mov_b32 s{t+6+k}, {k*8*2048}")
                    extra_done = True
            cnt = 2 * (7 - f) if (last and f >= 4) else 6
            A.e(f"s_waitcnt lgkmcnt({cnt})")
            Dd = v(acc(nb), 16)
            C = "0" if (st == 0 and q == 0) else Dd
            A.e(f"v_mfma_f32_32x32x16_bf16 {Dd}, {v(bfr(f),4)}, {v(af(ring, q),4)}, {C}")
            if f < 4:
                bread(A, ring, f + 4)
            elif not last:
                bread(A, (ring + 1) % R, f - 4)
            pend = pend0 if f < 4 else pend1
            n_take = -(-len(pend) // (4 - f % 4)) if pend else 0
            for tag, g in pend[:n_take]:
                for l in g:
                    A.e(l)
                issued.append(("st", tag) if tag != "P" else ("P", 0))
            del pend[:n_take]
    assert extra_done and nxt == NST
    A.stamp_mid(52, 1)
    A.e("s_waitcnt vmcnt(0)")
    A.nop(8)
    T = V_AF
    for nb in range(2):
        for r in range(16):
            A.e(f"v_accvgpr_read_b32 v{T+r}, a{A_P+nb*16+r}")
            A.e(f"v_accvgpr_read_b32 v{T+16+r}, a{A_P+32+nb*16+r}")
        for r in range(0, 16, 2):
            A.e(f"v_pk_add_f32 {v(T+r,2)}, {v(T+r,2)}, {v(T+16+r,2)}")
        for r in range(0, 16, 2):
            A.e(f"v_pk_add_f32 {v(acc(nb)+r,2)}, {v(acc(nb)+r,2)}, {v(T+r,2)}")
        for g in range(4):
            A.e(f"ds_write_b128 v{V_TW}, {v(acc(nb)+4*g,4)} offset:{(nb*32+8*g)*4}")
    A.e("s_waitcnt lgkmcnt(0)")
    for k in range(4):
        A.e(f"ds_read_b128 {v(T+8*k,4)}, v{V_TR} offset:{k*8*TR_ROW}")
        A.e(f"ds_read_b128 {v(T+8*k+4,4)}, v{V_TR} offset:{k*8*TR_ROW+16}")
    A.e(f"s_mov_b32 s{t}, 0xffff0000")
    X2 = T + 32
    for q in range(16):
        A.e(f"v_lshlrev_b32 v{X2+2*q}, 16, v{V_XR+q}")
        A.e(f"v_and_b32 v{X2+2*q+1}, s{t}, v{V_XR+q}")
    A.e("s_waitcnt lgkmcnt(0)")
    for r in range(0, 32, 2):
        A.e(f"v_pk_add_f32 {v(T+r,2)}, {v(T+r,2)}, {v(X2+r,2)}")
    for q in range(16):
        A.e(f"v_cvt_pk_bf16_f32 v{V_XR+q}, v{T+2*q}, v{T+2*q+1}")
    for k in range(4):
        A.e(f"buffer_store_dwordx4 {v(V_XR+4*k,4)}, v{V_GA}, s[{SRD_OUT}:{SRD_OUT+3}], s{t+6+k} offen")
    A.stamp_end(52, SRD_WS, T, 3)
    A.label(done)
    A.e("s_endpgm")
    return A.text(), dict(vgpr=NV + 64, sgpr=72, accum=NV, lds=LDS_BYTES, block=256)
```

```python
import math

WS_BYTES = 268435456
MB = 1 << 20
WS_XN = 0
WS_QF = 4 * MB
WS_KV = 8 * MB
WS_OH = 16 * MB
OH_STRIDE = 4608 * 2

QSCALE = (32 ** -0.5) * math.log2(math.e)
WS_XCH = 40 * MB
WS_FLAG = 48 * MB
WS_P = 56 * MB
```

```python
import sys, os
sys.path.insert(0, os.path.dirname(os.path.abspath(__file__)))
from asmlib import *
from k0_ln import gen_k0
from k1_gemm1 import gen_k1
from k2_attn import gen_k2
from k3_gemm2 import gen_k3
from k2f_fused import gen_k2f
from k3w_wo import gen_k3w

HEADER = open("parallel_sum__mha_block__swiglu_ffn__prompt.s.ref").read().split("; Override launch")[0]

class PF2:
    def loads(self, A):
        A.e("s_load_dwordx2 s[48:49], s[0:1], 16")
        A.e("s_load_dwordx2 s[50:51], s[0:1], 48")
    def issue(self, A):
        A.srd(52, 48, 1024 * 1024 * 2)
        A.srd(56, 50, 3584 * 1024 * 2)
        A.e("s_lshl_b32 s48, s2, 3")
        A.e("s_add_u32 s48, s48, s14")
        A.e("s_lshl_b32 s49, s48, 10")
        A.e("s_lshl_b32 s50, s48, 12")
        A.e("buffer_load_dwordx4 v[152:155], v2, s[52:55], s49 offen")
        for u in range(4):
            A.e(f"buffer_load_dwordx4 v[{156+4*u}:{159+4*u}], v2, s[56:59], s50 offen offset:{u*1024}")
        return 5

PFON = os.environ.get("PF", "1") == "1"

def build(out):
    ks = [("ln_kernel", gen_k0(PFON), 512, 256),
          ("gemm1_kernel", gen_k1(), 256, 512),
          ("attn_kernel", gen_k2(PF2() if PFON else None), 256, 512),
          ("gemm2_kernel", gen_k3(), 256, 256)]
    if os.environ.get("FUSED", "1") == "1":
        ks[2] = ("attn_kernel", gen_k2f(), 512, 256)
        ks[3] = ("gemm2_kernel", gen_k3w(), 256, 256)
    if os.environ.get("LNF", "1") == "1":
        ks = ks[1:]
    txt = HEADER
    for name, (body, m), grid, blk in ks:
        txt += f"; @launch kernel={name} grid=({grid},1,1) block=({blk},1,1) lds={m.get('lds',0)}\n"
    txt += '.amdgcn_target "amdgcn-amd-amdhsa--gfx950"\n.text\n'
    for name, (body, m), grid, blk in ks:
        txt += kernel_wrap(name, body, m['vgpr'], m['sgpr'], m['accum'])
    txt += '.section .rodata,"a"\n'
    for name, (body, m), grid, blk in ks:
        txt += kernel_desc(name, m['vgpr'], m['sgpr'], m['accum'])
    open(out, "w").write(txt)

if __name__ == "__main__":
    out = sys.argv[1] if len(sys.argv) > 1 else "parallel_sum__mha_block__swiglu_ffn__prompt.s"
    if len(sys.argv) > 2 and sys.argv[2] == "stamp":
        STAMP[0] = True
    build(out)
    print("wrote", out, os.path.getsize(out))
```

```python
import os
from asmlib import *
from layout import *

XA = 0
XA_SLOT = 16384
QKVA = 65536
QKV_SLOT = 6144
GUA = QKVA + 4 * QKV_SLOT
GU_U = 7296
GU_SLOT = 14592
LDS_BYTES = GUA + 4 * GU_SLOT

NST = 32

S_WQKV, S_WG, S_WU, S_WS = 4, 6, 8, 10
SRD_WS = 12
SRD_B = [16, 20, 24]
S_J, S_I, S_W, S_WM = 28, 29, 30, 31
S_SOFFA = 32
S_SOFFB = [33, 34, 35]
S_STRB = [36, 37, 38]
S_M0A = [40, 44]
S_M0B = [48, 52, 56]
S_CNT = 60
S_T = 62
S_C0 = 72

V_LANE = 1
V_X = [2, 3]
V_WQ, V_WG = 4, 5
V_OFFA = [6, 7]
V_OFFB = [8, 9, 10]
V_T = 11
V_XF = 16
V_WF = 32
V_E = 52


def xf(buf, mb):
    return V_XF + (buf * 2 + mb) * 4


def wf(b):
    return V_WF + b * 4


V_ACC = 96


def acc(b, mb):
    return V_ACC + (b * 2 + mb) * 16


S_TS = [84, 85, 86]


def setup_bslot_pre(A, slot, tbase):
    t, tl, tmp = S_TS[slot], S_T + 1, S_T + 2
    A.c(f"B slot {slot} setup, t = {tbase} + wm")
    A.e(f"s_add_u32 s{t}, s{S_WM}, {tbase}")
    A.e(f"s_sub_u32 s{tl}, s{t}, 6")
    A.e(f"s_mov_b32 s{S_STRB[slot]}, {32*7168}")
    A.e(f"s_mov_b32 s{tmp}, {GUA}")
    A.e(f"s_mov_b32 s{tmp+1}, {GU_SLOT}")
    A.e(f"s_sub_u32 s{tmp+3}, s{t}, 13")
    A.e(f"s_cmp_ge_u32 s{t}, 13")
    A.e(f"s_cselect_b32 s{tl}, s{tmp+3}, s{tl}")
    A.e(f"s_cselect_b32 s{tmp}, {GUA+GU_U}, s{tmp}")
    A.e(f"s_cmp_lt_u32 s{t}, 6")
    A.e(f"s_cselect_b32 s{tl}, s{t}, s{tl}")
    A.e(f"s_cselect_b32 s{S_STRB[slot]}, {32*6144}, s{S_STRB[slot]}")
    A.e(f"s_cselect_b32 s{tmp}, {QKVA}, s{tmp}")
    A.e(f"s_cselect_b32 s{tmp+1}, {QKV_SLOT}, s{tmp+1}")
    A.e(f"s_cselect_b64 s[{tmp+4}:{tmp+5}], -1, 0")
    A.e(f"s_lshl_b32 s{tmp+2}, s{tl}, 10")
    A.e(f"s_add_u32 s{S_M0B[slot]}, s{tmp}, s{tmp+2}")
    for r in range(1, 4):
        A.e(f"s_add_u32 s{S_M0B[slot]+r}, s{S_M0B[slot]+r-1}, s{tmp+1}")
    A.e(f"s_mov_b32 s{S_SOFFB[slot]}, 0")
    idx, k, c, o1, o2 = V_T, V_T + 1, V_T + 2, V_T + 3, V_T + 4
    A.e(f"s_lshl_b32 s{tmp+2}, s{tl}, 6")
    A.e(f"v_add_u32 v{idx}, s{tmp+2}, v{V_LANE}")
    A.e(f"v_mul_u32_u24 v{k}, 5462, v{idx}")
    A.e(f"v_lshrrev_b32 v{k}, 16, v{k}")
    A.e(f"v_mul_u32_u24 v{c}, 12, v{k}")
    A.e(f"v_sub_u32 v{c}, v{idx}, v{c}")
    A.e(f"v_mul_u32_u24 v{o1}, 6144, v{k}")
    A.e(f"v_lshrrev_b32 v{k}, 2, v{c}")
    A.e(f"v_lshl_add_u32 v{o1}, v{k}, 11, v{o1}")
    A.e(f"v_and_b32 v{k}, 3, v{c}")
    A.e(f"v_lshl_add_u32 v{o1}, v{k}, 4, v{o1}")
    A.e(f"s_lshl_b32 s{tmp+2}, s{S_J}, 6")
    A.e(f"v_add_u32 v{o1}, s{tmp+2}, v{o1}")
    A.e(f"v_mul_u32_u24 v{k}, 4682, v{idx}")
    A.e(f"v_lshrrev_b32 v{k}, 16, v{k}")
    A.e(f"v_mul_u32_u24 v{c}, 14, v{k}")
    A.e(f"v_sub_u32 v{c}, v{idx}, v{c}")
    A.e(f"v_mul_u32_u24 v{o2}, 7168, v{k}")
    A.e(f"v_lshl_add_u32 v{o2}, v{c}, 4, v{o2}")
    A.e(f"s_mul_i32 s{tmp+2}, s{S_J}, 224")
    A.e(f"v_add_u32 v{o2}, s{tmp+2}, v{o2}")
    A.e(f"v_cndmask_b32 v{V_OFFB[slot]}, v{o2}, v{o1}, s[{tmp+4}:{tmp+5}]")


def setup_bslot_post(A, slot, tbase):
    t = S_TS[slot]
    d = SRD_B[slot]
    lo, hi = tbase, tbase + 3
    kinds = []
    if lo < 6:
        kinds.append("Q")
    if hi >= 6 and lo < 13:
        kinds.append("G")
    if hi >= 13:
        kinds.append("U")
    ptr = {"Q": S_WQKV, "G": S_WG, "U": S_WU}
    nb = {"Q": 1024 * 3072 * 2, "G": 1024 * 3584 * 2, "U": 1024 * 3584 * 2}
    k0 = kinds[0]
    A.e(f"s_mov_b32 s{d}, s{ptr[k0]}")
    A.e(f"s_mov_b32 s{d+1}, s{ptr[k0]+1}")
    A.e(f"s_mov_b32 s{d+2}, {nb[k0]}")
    A.e(f"s_mov_b32 s{d+3}, 0x00020000")
    if len(kinds) > 1:
        k1 = kinds[1]
        thr = 6 if k1 == "G" else 13
        A.e(f"s_cmp_ge_u32 s{t}, {thr}")
        A.e(f"s_cselect_b32 s{d}, s{ptr[k1]}, s{d}")
        A.e(f"s_cselect_b32 s{d+1}, s{ptr[k1]+1}, s{d+1}")
        A.e(f"s_cselect_b32 s{d+2}, {nb[k1]}, s{d+2}")
    A.e(f"s_and_b32 s{d+1}, s{d+1}, 0xffff")


def dma_list(path):
    l = [("A", 0), ("A", 1), ("B", 0), ("B", 1)]
    if path == 0:
        l.append(("B", 2))
    return l


def emit_dma_m0(A, op, ring):
    kind, i = op
    sreg = (S_M0A[i] if kind == "A" else S_M0B[i]) + ring
    A.e(f"s_mov_b32 m0, s{sreg}")


ASC = os.environ.get('ASC', ' sc1') if os.environ.get('LNF', '1') == '1' else ''


def emit_dma(A, op):
    kind, i = op
    if kind == "A":
        A.e(f"buffer_load_dwordx4 v{V_OFFA[i]}, s[{SRD_WS}:{SRD_WS+3}], s{S_SOFFA} offen{ASC} lds")
    else:
        d = SRD_B[i]
        A.e(f"buffer_load_dwordx4 v{V_OFFB[i]}, s[{d}:{d+3}], s{S_SOFFB[i]} offen lds")


S_WDP = 100
S_PFC = 61
SRD_WD = 84
S_WDOFF = 39
V_L16 = 11
V_PFD = 12


def nB(path):
    return len([1 for (k, i) in dma_list(path) if k == "B"])


S_PFD = [88 - 8, 88 - 7, 88 - 6]
S_IH = 83


def emit_prefetch(A, path):
    skip = A.newlabel("pfskip")
    A.e(f"s_cmp_eq_u32 s{S_PFC}, s{S_IH}")
    A.e(f"s_cbranch_scc0 {skip}")
    k = 0
    for (kind, i) in dma_list(path):
        if kind == "B":
            d = SRD_B[i]
            A.e(f"s_add_u32 s{S_T}, s{S_PFD[i]}, s{S_SOFFB[i]}")
            A.e(f"buffer_load_dwordx4 v[{V_E+4*k}:{V_E+4*k+3}], v{V_OFFB[i]}, s[{d}:{d+3}], s{S_T} offen")
            k += 1
    A.label(skip)
    A.e(f"s_xor_b32 s{S_PFC}, s{S_PFC}, 1")
    A.e(f"buffer_load_dwordx4 v[{V_E+12}:{V_E+15}], v{V_L16}, s[{SRD_WD}:{SRD_WD+3}], s{S_WDOFF} offen")
    A.e(f"s_add_u32 s{S_WDOFF}, s{S_WDOFF}, {2*MB}")


def emit_dma_advance(A, path):
    A.e(f"s_add_u32 s{S_SOFFA}, s{S_SOFFA}, 64")
    for (kind, i) in dma_list(path):
        if kind == "B":
            A.e(f"s_add_u32 s{S_SOFFB[i]}, s{S_SOFFB[i]}, s{S_STRB[i]}")


def blocks_of(path):
    if path == 0:
        return [("Q", 0), ("K", 1), ("V", 2), ("G", 0), ("G", 1)]
    return [("G", 2), ("G", 3), ("G", 4), ("G", 5), ("G", 6)]


def emit_xreads(A, buf, ring, s_):
    for mb in range(2):
        A.e(f"ds_read_b128 {v(xf(buf, mb), 4)}, v{V_X[s_]} offset:{XA + ring*XA_SLOT + mb*2048}")


def emit_wreads(A, bi, blk, ring, s_):
    kind, idx = blk
    for rd in range(2):
        if kind == "G":
            off = ring * GU_SLOT + (16 * s_ + 4 * rd) * 224 + idx * 32
            A.e(f"ds_read_b64_tr_b16 {v(wf(bi)+2*rd, 2)}, v{V_WG} offset:{off}")
        else:
            off = ring * QKV_SLOT + (16 * s_ + 4 * rd) * 192 + idx * 64
            A.e(f"ds_read_b64_tr_b16 {v(wf(bi)+2*rd, 2)}, v{V_WQ} offset:{off}")


def emit_mfma(A, bi, blk, mb, buf, zero=False):
    kind, _ = blk
    D = v(acc(bi, mb), 16)
    C = "0" if zero else D
    W = v(wf(bi), 4)
    X = v(xf(buf, mb), 4)
    if kind == "V":
        A.e(f"v_mfma_f32_32x32x16_bf16 {D}, {X}, {W}, {C}")
    else:
        A.e(f"v_mfma_f32_32x32x16_bf16 {D}, {W}, {X}, {C}")


def emit_stage(A, path, ring, issue_dma, vm_wait, last, first=False, pf=False, pretail=False):
    blks = blocks_of(path)
    dl = dma_list(path)
    nb = len(blks)
    for s_ in range(2):
        has_next = not (last and s_ == 1)
        nring = ring if s_ == 0 else (ring + 1) % 4
        ns = s_ ^ 1
        if s_ == 1 and has_next:
            A.e(f"s_waitcnt vmcnt({vm_wait})")
            A.e("s_barrier")
        frag_pf = has_next and not (pretail and s_ == 1)
        if frag_pf:
            emit_xreads(A, ns, nring, ns)
        dma_now = (s_ == 1 and issue_dma) or (s_ == 0 and first)
        dring = (ring + 3) % 4 if s_ == 1 else (ring + 2) % 4
        for bi, blk in enumerate(blks):
            cnt = 10 if frag_pf else 2 * (nb - 1 - bi)
            A.e(f"s_waitcnt lgkmcnt({cnt})")
            do_dma = dma_now and bi < len(dl)
            if do_dma:
                emit_dma_m0(A, dl[bi], dring)
            emit_mfma(A, bi, blk, 0, s_, zero=(first and s_ == 0))
            if do_dma:
                emit_dma(A, dl[bi])
            if pf and s_ == 1 and bi == nb - 1:
                emit_prefetch(A, path)
            emit_mfma(A, bi, blk, 1, s_, zero=(first and s_ == 0))
            if frag_pf:
                emit_wreads(A, bi, blk, nring, ns)
        if dma_now:
            emit_dma_advance(A, path)


VA = V_E + 32


def emit_epilogue_setup(A, path):
    st = S_T
    A.c("epilogue setup")
    A.e(f"s_lshl_b32 s{st}, s{S_I}, 3")
    A.e(f"s_lshl_b32 s{st+1}, s{S_WM}, 1")
    A.e(f"s_add_u32 s{st}, s{st}, s{st+1}")
    A.e(f"s_mul_i32 s{st+1}, s{st}, 288")
    A.e(f"s_mul_i32 s{st+2}, s{S_J}, 7")
    A.e(f"s_add_u32 s{st+1}, s{st+1}, s{st+2}")
    A.e(f"s_lshl_b32 s{st+1}, s{st+1}, 10")
    A.e(f"s_add_u32 s{st+1}, s{st+1}, {WS_OH + 64*1024}")
    A.e(f"v_lshlrev_b32 v{VA}, 4, v{V_LANE}")
    A.e(f"v_add_u32 v{VA}, s{st+1}, v{VA}")
    A.e(f"v_add_u32 v{VA+1}, {288*1024}, v{VA}")
    if path == 0:
        A.e(f"s_lshl_b32 s{st+1}, s{S_J}, 6")
        A.e(f"s_add_u32 s{st+1}, s{st+1}, s{st}")
        A.e(f"s_lshl_b32 s{st+2}, s{st+1}, 11")
        A.e(f"s_add_u32 s{st+2}, s{st+2}, {WS_QF}")
        A.e(f"s_lshl_b32 s{st+3}, s{st+1}, 12")
        A.e(f"s_add_u32 s{st+3}, s{st+3}, {WS_KV}")
        A.e(f"v_lshlrev_b32 v{VA+2}, 4, v{V_LANE}")
        A.e(f"v_add_u32 v{VA+3}, s{st+3}, v{VA+2}")
        A.e(f"v_add_u32 v{VA+2}, s{st+2}, v{VA+2}")
        A.e(f"v_add_u32 v{VA+4}, 4096, v{VA+3}")
    A.e(f"s_mov_b32 s{S_C0+4}, {hex(f32bits(-math.log2(math.e)))}")
    A.e(f"s_mov_b32 s{S_C0+5}, {hex(f32bits(-math.log2(math.e)))}")
    A.e(f"s_mov_b32 s{S_C0+6}, {hex(f32bits(QSCALE))}")
    A.e(f"s_mov_b32 s{S_C0+7}, {hex(f32bits(QSCALE))}")
    A.e(f"s_mov_b32 s{S_C0}, 1.0")
    A.e(f"s_mov_b32 s{S_C0+1}, 1.0")


import os
STORE_FLAGS = os.environ.get("K1SF", " sc1")


def epilogue_ops(path, bi):
    kind, idx = blocks_of(path)[bi]
    ws = f"s[{SRD_WS}:{SRD_WS+3}]"
    cn = s(S_C0 + 4, 2)
    cq = s(S_C0 + 6, 2)
    c1 = s(S_C0, 2)
    ops = []
    for mb in range(2):
        ac = acc(bi, mb)
        U = V_E + 16 * mb
        if kind == "G":
            for r in range(0, 8, 2):
                ops.append(f"v_pk_mul_f32 {v(U+r,2)}, {v(ac+r,2)}, {cn}")
            for r in range(8):
                ops.append(f"v_exp_f32 v{U+r}, v{U+r}")
            for r in range(0, 8, 2):
                ops.append(f"v_pk_mul_f32 {v(ac+r,2)}, {v(ac+r,2)}, {v(ac+8+r,2)}")
            for r in range(0, 8, 2):
                ops.append(f"v_pk_add_f32 {v(U+r,2)}, {v(U+r,2)}, {c1}")
            for r in range(8):
                ops.append(f"v_rcp_f32 v{U+r}, v{U+r}")
            ops.append(f"s_mov_b32 s{S_C0+2}, {idx*1024}")
            for r in range(0, 8, 2):
                ops.append(f"v_pk_mul_f32 {v(ac+r,2)}, {v(ac+r,2)}, {v(U+r,2)}")
            for r in range(4):
                ops.append(f"v_cvt_pk_bf16_f32 v{U+8+r}, v{ac+2*r}, v{ac+2*r+1}")
            ops.append(f"buffer_store_dwordx4 {v(U+8,4)}, v{VA+mb}, {ws}, s{S_C0+2} offen{STORE_FLAGS}")
        else:
            if kind == "Q":
                for r in range(0, 16, 2):
                    ops.append(f"v_pk_mul_f32 {v(ac+r,2)}, {v(ac+r,2)}, {cq}")
            for r in range(8):
                ops.append(f"v_cvt_pk_bf16_f32 v{U+r}, v{ac+2*r}, v{ac+2*r+1}")
            if kind == "Q":
                for t in range(2):
                    ops.append(f"buffer_store_dwordx4 {v(U+4*t,4)}, v{VA+2}, {ws}, 0 offen offset:{mb*2048 + t*1024}{STORE_FLAGS}")
            else:
                o = 0 if kind == "K" else 2048
                for t in range(2):
                    ops.append(f"buffer_store_dwordx4 {v(U+4*t,4)}, v{VA+3+mb}, {ws}, 0 offen offset:{o + t*1024}{STORE_FLAGS}")
    return ops


def emit_tail(A, path, n):
    blks = blocks_of(path)
    steps = [(bi, r, s_) for bi in range(len(blks)) for r in (1, 2, 3) for s_ in range(2)]

    def reads(k):
        bi, r, s_ = steps[k]
        emit_xreads(A, k % 2, r, s_)
        kind, idx = blks[bi]
        for rd in range(2):
            if kind == "G":
                off = r * GU_SLOT + (16 * s_ + 4 * rd) * 224 + idx * 32
                A.e(f"ds_read_b64_tr_b16 {v(wf(k % 2)+2*rd, 2)}, v{V_WG} offset:{off}")
            else:
                off = r * QKV_SLOT + (16 * s_ + 4 * rd) * 192 + idx * 64
                A.e(f"ds_read_b64_tr_b16 {v(wf(k % 2)+2*rd, 2)}, v{V_WQ} offset:{off}")

    reads(0)
    pend = []
    for k, (bi, r, s_) in enumerate(steps):
        if k + 1 < len(steps):
            if k + 1 == 2:
                A.e(f"s_waitcnt vmcnt({n})")
                A.e("s_barrier")
            if k + 1 == 4:
                A.e("s_waitcnt vmcnt(0)")
                A.e("s_barrier")
            reads(k + 1)
            A.e("s_waitcnt lgkmcnt(4)")
        else:
            A.e("s_waitcnt lgkmcnt(0)")
        kind, _ = blks[bi]
        for mb in range(2):
            D = v(acc(bi, mb), 16)
            W = v(wf(k % 2), 4)
            X = v(xf(k % 2, mb), 4)
            if kind == "V":
                A.e(f"v_mfma_f32_32x32x16_bf16 {D}, {X}, {W}, {D}")
            else:
                A.e(f"v_mfma_f32_32x32x16_bf16 {D}, {W}, {X}, {D}")
            pos = (k % 6) * 2 + mb
            if pend and pos >= 2:
                if pos == 2:
                    A.nop(4)
                take = -(-len(pend) // (12 - pos))
                for op in pend[:take]:
                    A.e(op)
                pend = pend[take:]
        if k % 6 == 5:
            assert not pend
            pend = epilogue_ops(path, bi)
    A.nop(16)
    for op in pend:
        A.e(op)


LNF = os.environ.get("LNF", "1") == "1"
LB = 96


def ln_reduce(A, r, tmp, sbase):
    A.nop(2)
    A.e(f"v_add_f32 v{r}, v{r}, v{r} quad_perm:[1,0,3,2] row_mask:0xf bank_mask:0xf")
    A.nop(2)
    A.e(f"v_add_f32 v{r}, v{r}, v{r} quad_perm:[2,3,0,1] row_mask:0xf bank_mask:0xf")
    A.nop(2)
    A.e(f"v_add_f32 v{r}, v{r}, v{r} row_half_mirror row_mask:0xf bank_mask:0xf")
    A.nop(2)
    A.e(f"v_add_f32 v{r}, v{r}, v{r} row_mirror row_mask:0xf bank_mask:0xf")
    A.nop(2)
    for k in range(4):
        A.e(f"v_readlane_b32 s{sbase+k}, v{r}, {16*k}")
    A.nop(2)
    A.e(f"v_mov_b32 v{tmp}, s{sbase}")
    for k in range(1, 4):
        A.e(f"v_add_f32 v{tmp}, s{sbase+k}, v{tmp}")


def ln_compute(A):
    b = LB
    sm = S_T + 4
    sr = S_T
    A.e(f"s_mov_b32 s{sm}, 0xffff0000")
    for i in range(8):
        A.e(f"v_lshlrev_b32 v{b+16+2*i}, 16, v{b+4+i}")
        A.e(f"v_and_b32 v{b+17+2*i}, s{sm}, v{b+4+i}")
    for i in range(8):
        A.e(f"v_add_f32 v{b+32+i}, v{b+16+2*i}, v{b+17+2*i}")
    for i in range(4):
        A.e(f"v_add_f32 v{b+32+i}, v{b+32+i}, v{b+36+i}")
    A.e(f"v_add_f32 v{b+32}, v{b+32}, v{b+34}")
    A.e(f"v_add_f32 v{b+33}, v{b+33}, v{b+35}")
    A.e(f"v_add_f32 v{b+40}, v{b+32}, v{b+33}")
    ln_reduce(A, b + 40, b + 41, sr)
    A.e(f"v_mul_f32 v{b+41}, {hex(f32bits(1.0/1024))}, v{b+41}")
    for i in range(16):
        A.e(f"v_sub_f32 v{b+48+i}, v{b+16+i}, v{b+41}")
    for i in range(4):
        A.e(f"v_mul_f32 v{b+32+i}, v{b+48+i}, v{b+48+i}")
    for i in range(4, 16):
        A.e(f"v_fmac_f32 v{b+32+(i%4)}, v{b+48+i}, v{b+48+i}")
    A.e(f"v_add_f32 v{b+32}, v{b+32}, v{b+33}")
    A.e(f"v_add_f32 v{b+34}, v{b+34}, v{b+35}")
    A.e(f"v_add_f32 v{b+40}, v{b+32}, v{b+34}")
    ln_reduce(A, b + 40, b + 42, sr)
    A.e(f"v_mul_f32 v{b+42}, {hex(f32bits(1.0/1024))}, v{b+42}")
    A.e(f"v_cvt_pk_bf16_f32 v{b+43}, v{b+41}, v{b+42}")
    A.e(f"v_lshlrev_b32 v{b+44}, 16, v{b+43}")
    A.e(f"v_and_b32 v{b+45}, s{sm}, v{b+43}")
    A.e(f"v_add_f32 v{b+45}, {hex(f32bits(1e-5))}, v{b+45}")
    A.e(f"v_cvt_pk_bf16_f32 v{b+45}, v{b+45}, v{b+45}")
    A.e(f"v_and_b32 v{b+45}, s{sm}, v{b+45}")
    A.e(f"v_sqrt_f32 v{b+45}, v{b+45}")
    A.nop(1)
    A.e(f"v_cvt_pk_bf16_f32 v{b+45}, v{b+45}, v{b+45}")
    A.e(f"v_and_b32 v{b+45}, s{sm}, v{b+45}")
    A.e(f"v_rcp_f32 v{b+45}, v{b+45}")
    for i in range(16):
        A.e(f"v_sub_f32 v{b+48+i}, v{b+16+i}, v{b+44}")
    for i in range(8):
        A.e(f"v_cvt_pk_bf16_f32 v{b+32+i}, v{b+48+2*i}, v{b+49+2*i}")
    for i in range(8):
        A.e(f"v_lshlrev_b32 v{b+48+2*i}, 16, v{b+32+i}")
        A.e(f"v_and_b32 v{b+49+2*i}, s{sm}, v{b+32+i}")
    for i in range(16):
        A.e(f"v_mul_f32 v{b+48+i}, v{b+48+i}, v{b+45}")
    for i in range(8):
        A.e(f"v_cvt_pk_bf16_f32 v{b+4+i}, v{b+48+2*i}, v{b+49+2*i}")


def emit_path(A, path):
    dl = dma_list(path)
    n = len(dl)
    blks = blocks_of(path)
    slots = [(0, 0), (1, 4), (2, 8)] if path == 0 else [(0, 12), (1, 16)]
    for sl, tb in slots:
        setup_bslot_pre(A, sl, tb)
    A.e(f"s_mov_b32 s{S_CNT}, 0")
    A.e(f"s_mov_b32 s{S_PFC}, 0")
    A.e(f"s_lshr_b32 s{S_IH}, s{S_I}, 2")
    A.e(f"s_and_b32 s{S_T}, s{S_I}, 3")
    A.e(f"s_add_u32 s{S_T}, s{S_T}, 5")
    for sl, tb in slots:
        A.e(f"s_mul_i32 s{S_PFD[sl]}, s{S_T}, s{S_STRB[sl]}")
    if not LNF:
        A.e("s_waitcnt lgkmcnt(0)")
    A.srd(SRD_WS, S_WS, WS_BYTES)
    for sl, tb in slots:
        setup_bslot_post(A, sl, tb)
    A.srd(SRD_WD, S_WDP, 3584 * 1024 * 2)
    A.e(f"s_lshl_b32 s{S_WDOFF}, s2, 3")
    A.e(f"s_add_u32 s{S_WDOFF}, s{S_WDOFF}, s{S_W}")
    A.e(f"s_lshl_b32 s{S_WDOFF}, s{S_WDOFF}, 10")
    A.e(f"s_sub_u32 s{S_WDOFF}, s{S_WDOFF}, {6*MB}")
    A.e(f"v_lshlrev_b32 v{V_L16}, 4, v{V_LANE}")
    w = n
    if not LNF:
        for st in range(2):
            for op in dl:
                emit_dma_m0(A, op, st)
                A.nop(1)
                emit_dma(A, op)
            emit_dma_advance(A, path)
        A.e(f"s_waitcnt vmcnt({w})")
        A.e("s_barrier")
    else:
        bl = [op for op in dl if op[0] == "B"]
        al = [op for op in dl if op[0] == "A"]
        for st in range(2):
            for op in bl:
                emit_dma_m0(A, op, st)
                A.nop(1)
                emit_dma(A, op)
                A.e(f"s_add_u32 s{S_SOFFB[op[1]]}, s{S_SOFFB[op[1]]}, s{S_STRB[op[1]]}")
        for k, op in enumerate(bl):
            i_ = op[1]
            d = SRD_B[i_]
            A.e(f"s_mul_i32 s{S_T}, s{S_I}, s{S_STRB[i_]}")
            A.e(f"s_add_u32 s{S_T}, s{S_T}, s{S_SOFFB[i_]}")
            A.e(f"buffer_load_dwordx4 v[{V_E+4*k}:{V_E+4*k+3}], v{V_OFFB[i_]}, s[{d}:{d+3}], s{S_T} offen")
        A.e(f"s_waitcnt vmcnt({3*len(bl)})")
        ln_compute(A)
        ws = f"s[{SRD_WS}:{SRD_WS+3}]"
        A.e(f"buffer_store_dwordx4 v[{LB+4}:{LB+7}], v{LB}, {ws}, 0 offen sc1")
        A.e(f"buffer_store_dwordx4 v[{LB+8}:{LB+11}], v{LB}, {ws}, 0 offen offset:1024 sc1")
        A.srd(76, 74, 256)
        A.e(f"s_lshl_b32 s{S_T}, s{S_I}, 2")
        A.e(f"v_mov_b32 v{LB+1}, 1")
        A.e(f"v_mov_b32 v{LB+2}, 0")
        A.e("s_waitcnt vmcnt(0)")
        A.e("s_barrier")
        if path == 0:
            nop_ = A.newlabel("nopoll")
            A.e(f"s_cmp_lg_u32 s{S_W}, 0")
            A.e(f"s_cbranch_scc1 {nop_}")
            A.e("s_mov_b64 exec, 1")
            A.e(f"buffer_atomic_add v{LB+1}, v{LB+2}, s[76:79], s{S_T} offen")
            poll = A.newlabel("poll")
            A.label(poll)
            A.e(f"buffer_load_dword v{LB+3}, v{LB+2}, s[76:79], s{S_T} offen sc1")
            A.e("s_waitcnt vmcnt(0)")
            A.e(f"v_readfirstlane_b32 s{S_T+1}, v{LB+3}")
            A.nop(4)
            A.e(f"s_cmp_ge_u32 s{S_T+1}, 32")
            done_ = A.newlabel("polldone")
            A.e(f"s_cbranch_scc1 {done_}")
            A.e("s_sleep 1")
            A.e(f"s_branch {poll}")
            A.label(done_)
            A.e("s_mov_b64 exec, -1")
            A.label(nop_)
        A.e("s_barrier")
        for st in range(2):
            for op in al:
                emit_dma_m0(A, op, st)
                A.nop(1)
                emit_dma(A, op)
            A.e(f"s_add_u32 s{S_SOFFA}, s{S_SOFFA}, 64")
        A.e(f"s_waitcnt vmcnt({len(al)})")
        A.e("s_barrier")
    emit_xreads(A, 0, 0, 0)
    for bi, blk in enumerate(blks):
        emit_wreads(A, bi, blk, 0, 0)
    A.stamp_mid(88, 0)
    for r in range(4):
        emit_stage(A, path, r, True, w, False, first=(r == 0), pf=(r == 0))
    loop = A.newlabel("loop")
    A.label(loop)
    for r in range(4):
        emit_stage(A, path, r, True, w, False, pf=(r == 0))
    A.e(f"s_add_u32 s{S_CNT}, s{S_CNT}, 1")
    A.e(f"s_cmp_lt_u32 s{S_CNT}, 6")
    A.e(f"s_cbranch_scc1 {loop}")
    emit_epilogue_setup(A, path)
    emit_stage(A, path, 0, True, w, False, pretail=True)
    A.stamp_mid(88, 1)
    emit_tail(A, path, n)
    A.stamp_end(80 if False else 88, SRD_WS, V_E, 1)
    A.e("s_endpgm")


def gen_k1():
    A = Asm("k1")
    done = "L_k1_done"
    A.e("s_cmp_ge_u32 s2, 256")
    A.e(f"s_cbranch_scc1 {done}")
    A.stamp_begin(88)
    A.e(f"s_load_dwordx2 s[{S_WQKV}:{S_WQKV+1}], s[0:1], 8")
    A.e(f"s_load_dwordx2 s[{S_WG}:{S_WG+1}], s[0:1], 32")
    A.e(f"s_load_dwordx2 s[{S_WU}:{S_WU+1}], s[0:1], 40")
    A.e(f"s_load_dwordx2 s[{S_WS}:{S_WS+1}], s[0:1], 72")
    A.e(f"s_load_dwordx2 s[{S_WDP}:{S_WDP+1}], s[0:1], 48")
    if LNF:
        A.e("s_load_dwordx2 s[72:73], s[0:1], 0")
        A.e("s_load_dwordx2 s[74:75], s[0:1], 64")
    A.e(f"s_and_b32 s{S_J}, s2, 31")
    A.e(f"s_lshr_b32 s{S_I}, s2, 5")
    A.e(f"v_and_b32 v{V_LANE}, 63, v0")
    A.e(f"v_lshrrev_b32 v{V_T}, 6, v0")
    A.nop(1)
    A.e(f"v_readfirstlane_b32 s{S_W}, v{V_T}")
    A.nop(4)
    A.e(f"s_and_b32 s{S_WM}, s{S_W}, 3")
    if LNF:
        A.e(f"s_lshl_b32 s{S_T}, s{S_I}, 8")
        A.e(f"s_lshl_b32 s{S_T+1}, s{S_J}, 3")
        A.e(f"s_add_u32 s{S_T}, s{S_T}, s{S_T+1}")
        A.e(f"s_add_u32 s{S_T}, s{S_T}, s{S_W}")
        A.e(f"s_lshl_b32 s{S_T}, s{S_T}, 11")
        A.e(f"v_lshlrev_b32 v{LB}, 4, v{V_LANE}")
        A.e(f"v_add_u32 v{LB}, s{S_T}, v{LB}")
        A.e("s_waitcnt lgkmcnt(0)")
        A.srd(76, 72, 2048 * 1024 * 2)
        A.e(f"buffer_load_dwordx4 v[{LB+4}:{LB+7}], v{LB}, s[76:79], 0 offen")
        A.e(f"buffer_load_dwordx4 v[{LB+8}:{LB+11}], v{LB}, s[76:79], 0 offen offset:1024")
    t0, t1, t2 = V_T, V_T + 1, V_T + 2
    A.e(f"v_and_b32 v{t0}, 31, v{V_LANE}")
    A.e(f"s_lshl_b32 s{S_T}, s{S_WM}, 6")
    A.e(f"v_add_u32 v{t0}, s{S_T}, v{t0}")
    A.e(f"v_lshlrev_b32 v{t0}, 6, v{t0}")
    A.e(f"v_lshrrev_b32 v{t1}, 5, v{V_LANE}")
    A.e(f"v_bfe_u32 v{t2}, v{V_LANE}, 2, 2")
    A.e(f"v_xor_b32 v{t1}, v{t1}, v{t2}")
    A.e(f"v_lshl_add_u32 v{V_X[0]}, v{t1}, 4, v{t0}")
    A.e(f"v_xor_b32 v{t1}, 2, v{t1}")
    A.e(f"v_lshl_add_u32 v{V_X[1]}, v{t1}, 4, v{t0}")
    A.e(f"v_lshrrev_b32 v{t0}, 5, v{V_LANE}")
    A.e(f"v_lshlrev_b32 v{t0}, 3, v{t0}")
    A.e(f"v_bfe_u32 v{t1}, v{V_LANE}, 2, 2")
    A.e(f"v_add_u32 v{t0}, v{t0}, v{t1}")
    A.e(f"v_bfe_u32 v{t1}, v{V_LANE}, 4, 1")
    A.e(f"v_and_b32 v{t2}, 3, v{V_LANE}")
    A.e(f"v_lshlrev_b32 v{t2}, 3, v{t2}")
    A.e(f"v_mul_u32_u24 v{V_WQ}, 192, v{t0}")
    A.e(f"v_lshl_add_u32 v{V_WQ}, v{t1}, 5, v{V_WQ}")
    A.e(f"v_add_u32 v{V_WQ}, v{V_WQ}, v{t2}")
    A.e(f"v_add_u32 v{V_WQ}, {QKVA}, v{V_WQ}")
    A.e(f"v_mul_u32_u24 v{V_WG}, 224, v{t0}")
    A.e(f"v_mul_u32_u24 v{t1}, {GU_U}, v{t1}")
    A.e(f"v_add_u32 v{V_WG}, v{V_WG}, v{t1}")
    A.e(f"v_add_u32 v{V_WG}, v{V_WG}, v{t2}")
    A.e(f"v_add_u32 v{V_WG}, {GUA}, v{V_WG}")
    A.e(f"s_lshl_b32 s{S_T}, s{S_I}, 8")
    A.e(f"s_lshl_b32 s{S_T+1}, s{S_W}, 5")
    A.e(f"s_add_u32 s{S_T}, s{S_T}, s{S_T+1}")
    A.e(f"v_lshrrev_b32 v{t0}, 2, v{V_LANE}")
    A.e(f"v_add_u32 v{t0}, s{S_T}, v{t0}")
    A.e(f"v_lshlrev_b32 v{t0}, 11, v{t0}")
    A.e(f"v_and_b32 v{t1}, 3, v{V_LANE}")
    A.e(f"v_bfe_u32 v{t2}, v{V_LANE}, 4, 2")
    A.e(f"v_xor_b32 v{t1}, v{t1}, v{t2}")
    A.e(f"v_lshl_add_u32 v{V_OFFA[0]}, v{t1}, 4, v{t0}")
    A.e(f"v_add_u32 v{V_OFFA[1]}, {16*2048}, v{V_OFFA[0]}")
    assert WS_XN == 0
    A.e(f"s_lshl_b32 s{S_T}, s{S_W}, 11")
    for r in range(4):
        A.e(f"s_add_u32 s{S_M0A[0]+r}, s{S_T}, {XA + r*XA_SLOT}")
        A.e(f"s_add_u32 s{S_M0A[1]+r}, s{S_T}, {XA + r*XA_SLOT + 1024}")
    A.e(f"s_mov_b32 s{S_SOFFA}, 0")
    p1 = "L_k1_path1"
    A.e(f"s_cmp_ge_u32 s{S_W}, 4")
    A.e(f"s_cbranch_scc1 {p1}")
    emit_path(A, 0)
    A.label(p1)
    emit_path(A, 1)
    A.label(done)
    A.e("s_endpgm")
    return A.text(), dict(vgpr=256, sgpr=102, accum=256, lds=LDS_BYTES)
```
